```python
import torch

def _softmax(x, axis=-1):
    return torch.softmax(x, dim=axis)
def _gelu(x):
    return torch.nn.functional.gelu(x, approximate="tanh")
def _silu(x):
    return torch.nn.functional.silu(x)
def _sigmoid(x):
    return torch.sigmoid(x)
def _layernorm(x, axis=-1, eps=1e-5):
    m = x.mean(dim=axis, keepdim=True)
    v = x.var(dim=axis, keepdim=True, unbiased=False)
    return (x - m) / torch.sqrt(v + eps)
def _scatter_add(tgt, idx, src, axis=0):
    return tgt.clone().index_add_(axis, idx, src)
def _segment_sum(src, seg, n):
    out = torch.zeros((n,) + src.shape[1:], dtype=src.dtype)
    return out.index_add_(0, seg, src)
def _pad(x, pw):
    flat = tuple(v for pair in reversed(pw) for v in pair)
    return torch.nn.functional.pad(x, flat)

kernel_name = 'recurrent_scan__ssm_conv_h3__mixer_s_mlp__prompt'

def setup_inputs():

    _w = (lambda a: (lambda t: t.to(torch.bfloat16) if t.is_floating_point() else t)(torch.as_tensor(a)))
    def _A_setup():
        B, S, D = 1, 2048, 512
        ks = 4
        return {
            "q": _w((lambda *s: torch.randn(*s, dtype=torch.bfloat16) * 0.05)(B, S, D)),
            "k": _w((lambda *s: torch.randn(*s, dtype=torch.bfloat16) * 0.2)(B, S, D)),
            "v": _w((lambda *s: torch.randn(*s, dtype=torch.bfloat16) * 0.2)(B, S, D)),
            "shift_k": _w((lambda *s: torch.randn(*s, dtype=torch.bfloat16) * 0.2)(D, ks) * 0.5),
            "ssm_k": _w((lambda *s: torch.randn(*s, dtype=torch.bfloat16) * 0.2)(D, S) * (1.0 / S ** 0.5)),
            "ssm_D": _w((lambda *s: torch.randn(*s, dtype=torch.bfloat16) * 0.2)(D)),
        }
    _A_in = _A_setup()

    def _B_setup():
        B, S, D, F = 1, 2048, 512, 1792
        return {
            "x":  _w((lambda *s: torch.randn(*s, dtype=torch.bfloat16) * 0.05)(B, S, D)),
            "w1": _w((lambda *s: torch.randn(*s, dtype=torch.bfloat16) * 3.2)(D, D) * (D ** -0.5)),
            "w2": _w((lambda *s: torch.randn(*s, dtype=torch.bfloat16) * 3.2)(D, D) * (D ** -0.5)),
            "w3": _w((lambda *s: torch.randn(*s, dtype=torch.bfloat16) * 3.2)(D, F) * (D ** -0.5)),
            "w4": _w((lambda *s: torch.randn(*s, dtype=torch.bfloat16) * 3.2)(F, D) * (F ** -0.5)),
        }
    _B_in = _B_setup()

    return {
        "A_q": _A_in["q"],
        "A_k": _A_in["k"],
        "A_v": _A_in["v"],
        "A_shift_k": _A_in["shift_k"],
        "A_ssm_k": _A_in["ssm_k"],
        "A_ssm_D": _A_in["ssm_D"],
        "B_x": _B_in["x"],
        "B_w1": _B_in["w1"],
        "B_w2": _B_in["w2"],
        "B_w3": _B_in["w3"],
        "B_w4": _B_in["w4"],
    }

def reference(A_q, A_k, A_v, A_shift_k, A_ssm_k, A_ssm_D, B_x, B_w1, B_w2, B_w3, B_w4):
    def _A_ref(q, k, v, shift_k, ssm_k, ssm_D):
        B, S, D = q.shape
        ks = shift_k.shape[-1]
        k_pad = _pad(k, ((0, 0), (ks - 1, 0), (0, 0)))
        k_shift = torch.zeros_like(k)
        for t in range(ks):
            k_shift = k_shift + k_pad[:, t:t + S, :] * shift_k[:, ks - 1 - t][None, None, :]
        kv = k_shift * v
        L = 2 * S
        kv_pad = _pad(kv, ((0, 0), (0, S), (0, 0)))
        kf_pad = _pad(ssm_k, ((0, 0), (0, S)))
        kv_f = (lambda x, axes=(-2,-1): torch.fft.rfft2(x.float(), dim=axes))(kv_pad[:, None, :, :], axes=(1, 2))
        kf_f = (lambda x, axes=(-2,-1): torch.fft.rfft2(x.float(), dim=axes))(kf_pad[:, None, :], axes=(1, 2))
        kf_f = (lambda x, *d: x.permute(*d))(kf_f, 1, 2, 0)
        y_f = kv_f * kf_f[None, :, :, :]
        y = (lambda x, s, axes=(-2,-1): torch.fft.irfft2(x, s=s, dim=axes).to(torch.bfloat16))(y_f, (1, L), axes=(1, 2))[:, 0, :S, :]
        y = y + kv * ssm_D[None, None, :]
        return q * y

    def _B_ref(x, w1, w2, w3, w4):
        B, S, D = x.shape
        h = _gelu(_layernorm(x, axis=-1) @ w1)
        c = D // 4
        g0 = _pad(h[:, :, 0*c:1*c], ((0, 0), (1, 0), (0, 0)))[:, :S, :]
        g1 = _pad(h[:, :, 1*c:2*c], ((0, 0), (0, 1), (0, 0)))[:, 1:, :]
        g2 = _pad(h[:, :, 2*c:3*c], ((0, 0), (2, 0), (0, 0)))[:, :S, :]
        g3 = _pad(h[:, :, 3*c:   ], ((0, 0), (0, 2), (0, 0)))[:, 2:, :]
        hs = torch.concatenate([g0, g1, g2, g3], axis=-1) @ w2
        x1 = x + hs
        h2 = _gelu(_layernorm(x1, axis=-1) @ w3) @ w4
        return x1 + h2

    x = A_q
    xn = _layernorm(x, axis=-1)
    s = _A_ref(xn, A_k, A_v, A_shift_k, A_ssm_k, A_ssm_D)
    g = _silu(_B_ref(xn, B_w1, B_w2, B_w3, B_w4))
    return x + s * g
```

```python
import re

REG_RE = re.compile(r'^(-|abs\()?([vas])(?:(\d+)|\[(\d+):(\d+)\])\)?$')
TRANS = ('v_exp_f32', 'v_log_f32', 'v_rcp_f32', 'v_rsq_f32', 'v_sqrt_f32', 'v_sin_f32', 'v_cos_f32', 'v_rcp_iflag_f32')

def regs_of(op):
    op = op.strip()
    if op == 'vcc': return {('s', 'vcc')}
    if op in ('vcc_lo', 'vcc_hi'): return {('s', 'vcc')}
    if op == 'exec' or op in ('exec_lo', 'exec_hi'): return {('s', 'exec')}
    if op == 'm0': return {('s', 'm0')}
    m = REG_RE.match(op)
    if not m: return set()
    k = m.group(2)
    if m.group(3) is not None: return {(k, int(m.group(3)))}
    return {(k, i) for i in range(int(m.group(4)), int(m.group(5)) + 1)}

def split_ops(s):
    out, depth, cur = [], 0, ''
    for ch in s:
        if ch in '[(': depth += 1
        if ch in '])': depth -= 1
        if ch == ',' and depth == 0:
            out.append(cur.strip()); cur = ''
        else: cur += ch
    if cur.strip(): out.append(cur.strip())
    return out

class Ins:
    __slots__ = ('text', 'op', 'ops', 'mods', 'cls', 'w', 'r', 'label', 'note', 'srcC', 'srcAB', 'passes', 'target', 'sdata')
    def __init__(self, text):
        self.text = text
        code, _, note = text.partition(';')
        self.note = note.strip(); code = code.strip()
        self.label = None; self.target = None; self.w = set(); self.r = set(); self.srcC = set(); self.srcAB = set()
        self.passes = 0; self.ops = []; self.mods = ''; self.sdata = set()
        if code.endswith(':'):
            self.label = code[:-1]; self.op = ''; self.cls = 'label'; return
        if not code or code.startswith('.'):
            self.op = ''; self.cls = 'dir'; return
        parts = code.split(None, 1)
        self.op = op = parts[0]
        rest = parts[1] if len(parts) > 1 else ''
        ops = split_ops(rest)
        if ops:
            last = ops[-1].split(None, 1)
            if len(last) > 1 and not op.startswith('s_waitcnt'):
                ops[-1] = last[0]; self.mods = last[1]
        self.ops = ops
        R = lambda xs: set().union(*[regs_of(x) for x in xs]) if xs else set()
        if op.startswith('v_mfma'):
            self.cls = 'mfma'; self.w = R(ops[:1]); self.srcAB = R(ops[1:3]); self.srcC = R(ops[3:4]); self.r = self.srcAB | self.srcC
            self.passes = 8 if '32x32' in op else 4
        elif op.startswith('v_'):
            self.cls = 'valu'
            nd = 2 if re.match(r'v_(add|sub|subrev|addc|subb|subbrev)_co_|v_div_scale|v_mad_u64', op) else 1
            if op.startswith('v_permlane') and 'swap' in op:
                self.w = R(ops[:2]); self.r = R(ops[:2])
            elif op == 'v_nop': pass
            else:
                self.w = R(ops[:nd]); self.r = R(ops[nd:])
                if re.match(r'v_(fmac|dot2c|pk_fmac|mac|writelane)', op) or '_dpp' in op or '_sdwa' in op or 'row_' in self.mods or 'wave_' in self.mods or 'quad_perm' in self.mods:
                    self.r |= R(ops[:1])
                if op.startswith('v_cndmask') and len(ops) == 3: self.r |= {('s', 'vcc')}
            self.r |= {('s', 'exec')}
        elif op.startswith('ds_'):
            self.cls = 'ds'
            if re.match(r'ds_(read|bpermute|permute|swizzle)', op):
                self.w = R(ops[:1]); self.r = R(ops[1:])
                if 'd16' in op: self.r |= self.w
            else: self.r = R(ops)
        elif re.match(r'(buffer|global)_', op):
            self.cls = 'vmem'
            allm = self.mods.split()
            if op in ('buffer_inv', 'buffer_wbl2'): pass
            elif 'lds' in allm or '_lds_' in op:
                self.r = R(ops) | {('s', 'm0')}
            elif '_load' in op:
                self.w = R(ops[:1]); self.r = R(ops[1:])
                if 'd16' in op: self.r |= self.w
            elif '_store' in op:
                self.r = R(ops)
                if re.search(r'x[34]$', op): self.sdata = R(ops[:1]) if op.startswith('buffer') else R(ops[1:2])
            elif '_atomic' in op:
                self.r = R(ops)
                if 'sc0' in allm: self.w = R(ops[:1])
        elif re.match(r's_(load|memtime|memrealtime|atomic|buffer_load)', op):
            self.cls = 'smem'; self.w = R(ops[:1]); self.r = R(ops[1:])
        elif op.startswith('s_cbranch') or op == 's_branch':
            self.cls = 'branch'; self.target = ops[0]
        elif op in ('s_waitcnt', 's_barrier', 's_nop', 's_endpgm', 's_sleep', 's_setprio'):
            self.cls = op
        elif op.startswith('s_'):
            self.cls = 'salu'
            if op.startswith('s_cmp') or op.startswith('s_bitcmp'): self.r = R(ops)
            else:
                self.w = R(ops[:1]); self.r = R(ops[1:])
                if 'saveexec' in op: self.w |= {('s', 'exec')}; self.r |= {('s', 'exec')}
                if op in ('s_addk_i32', 's_mulk_i32'): self.r |= self.w
        else:
            raise ValueError('unparsed: ' + text)
    def states(self):
        if self.cls in ('label', 'dir'): return 0
        if self.cls == 's_nop': return int(self.ops[0], 0) + 1
        return 1

def vec(s): return {x for x in s if x[0] in 'va'}
def sca(s): return {x for x in s if x[0] == 's'}

def need(p, c):
    n = 0
    dpp = '_dpp' in c.op or 'row_' in c.mods or 'wave_' in c.mods or 'quad_perm' in c.mods
    if p.cls == 'valu':
        pw_v, pw_s = vec(p.w), sca(p.w)
        if c.cls == 'mfma' and pw_v & c.r: n = max(n, 2)
        if c.cls == 'mfma' and ('s', 'exec') in pw_s: n = max(n, 4)
        if c.cls == 'vmem' and pw_s & c.r: n = max(n, 5)
        if c.cls == 'valu':
            if (pw_s - {('s', 'exec')}) & c.r: n = max(n, 4 if re.match(r'v_(readlane|writelane)', c.op) else 2)
            if dpp and pw_v & c.r: n = max(n, 2)
            if c.op.startswith('v_permlane') and pw_v & c.r: n = max(n, 2)
            if re.match(r'v_read(first)?lane', c.op) and pw_v & c.r: n = max(n, 1)
            if p.op.split('_e')[0] in TRANS and pw_v & c.r and c.op.split('_e')[0] not in TRANS: n = max(n, 1)
            if ('_sdwa' in p.op or 'op_sel:' in p.mods and not p.op.startswith('v_pk')) and pw_v & (c.r | c.w): n = max(n, 1)
        if p.op.startswith('v_dot') and pw_v & (c.r | c.w) and c.cls in ('valu', 'mfma', 'vmem', 'ds'):
            if c.op != p.op or pw_v & set().union(*[regs_of(o) for o in c.ops[1:3]]): n = max(n, 3)
        if c.cls == 'branch' and 'vcc' in c.op and ('s', 'vcc') in pw_s: n = max(n, 0)
    if p.cls == 'mfma':
        big = p.passes == 8
        if c.cls == 'mfma':
            if p.w & c.srcAB: n = max(n, 12 if big else 8)
            if p.w & c.srcC and not (p.w == c.srcC and p.passes == c.passes): n = max(n, 10 if big else 6)
            if p.w & c.w and not (p.w & c.srcC): n = max(n, 12 if big else 8)
        elif c.cls in ('valu', 'vmem', 'ds'):
            if p.w & (c.r | c.w): n = max(n, 12 if big else 8)
            if c.cls == 'valu' and p.srcC & c.w: n = max(n, 7 if big else 3)
    if p.cls == 'salu' and ('s', 'm0') in p.w and c.cls == 'vmem' and ('s', 'm0') in c.r: n = max(n, 1)
    if p.cls == 'vmem' and p.sdata and c.cls in ('valu', 'mfma') and p.sdata & c.w: n = max(n, 2)
    if p.cls == 'vmem' and p.sdata and c.cls in ('vmem', 'ds') and p.sdata & c.w: n = max(n, 1)
    return n

def insert_nops(lines):
    ins = [Ins(l) for l in lines]
    changed = True; total = 0
    while changed:
        changed = False
        lab = {x.label: i for i, x in enumerate(ins) if x.label}
        jump = {}
        for i, x in enumerate(ins):
            if x.cls == 'branch': jump.setdefault(lab[x.target], []).append(i)
        out = []
        for i, c in enumerate(ins):
            if c.cls in ('valu', 'mfma', 'vmem', 'ds'):
                worst = 0
                stack = [(i - 1, 0)]; seen = set()
                while stack:
                    j, d = stack.pop()
                    while j >= 0 and d < 14:
                        if (j, d) in seen: break
                        seen.add((j, d))
                        p = ins[j]
                        if p.label:
                            for b in jump.get(j, []): stack.append((b, d))
                            if j > 0 and (ins[j - 1].op in ('s_branch', 's_endpgm')): break
                        elif p.cls not in ('dir',):
                            k = need(p, c)
                            if k > d: worst = max(worst, k - d)
                            d += p.states()
                        j -= 1
                if worst:
                    out.append(Ins(f's_nop {worst - 1}')); changed = True; total += 1
            out.append(c)
        ins = out
        if changed:
            continue
    return [x.text for x in ins], total

class Emit:
    def __init__(self):
        self.lines = []; self.vm = []; self.lg = []; self.auto = True
    def raw(self, t): self.lines.append(t)
    def label(self, n): self.lines.append(n + ':')
    def c(self, t): self.lines.append('; ' + t)
    def _cover(self, q, regs):
        idx = -1
        for i, (w, tag) in enumerate(q):
            if w & regs: idx = i
        return idx
    def __call__(self, text, tag=None):
        for t in text.strip().split('\n'):
            t = t.strip()
            if not t: continue
            x = Ins(t)
            if x.cls == 's_waitcnt':
                m = re.search(r'vmcnt\((\d+)\)', t)
                if m:
                    n = int(m.group(1)); self.vm = self.vm[len(self.vm) - n:] if n < len(self.vm) else self.vm
                    if n == 0: self.vm = []
                m = re.search(r'lgkmcnt\((\d+)\)', t)
                if m:
                    n = int(m.group(1)); self.lg = self.lg[len(self.lg) - n:] if n < len(self.lg) else self.lg
                    if n == 0: self.lg = []
            elif self.auto and x.cls not in ('label', 'dir'):
                touch = x.r | x.w
                i = self._cover(self.vm, touch)
                w = []
                if i >= 0:
                    n = len(self.vm) - 1 - i; assert n < 64; w.append(f'vmcnt({n})'); self.vm = self.vm[i + 1:]
                i = self._cover(self.lg, touch)
                if i >= 0:
                    n = len(self.lg) - 1 - i
                    if any(tg == 'smem' for _, tg in self.lg): n = 0
                    n = min(n, 15); w.append(f'lgkmcnt({n})'); self.lg = self.lg[len(self.lg) - n:] if n else []
                if w: self.lines.append('s_waitcnt ' + ' '.join(w))
            if x.cls == 'vmem' and x.op not in ('buffer_inv', 'buffer_wbl2'): self.vm.append((x.w, tag))
            if x.cls == 'ds': self.lg.append((x.w, 'ds'))
            if x.cls == 'smem': self.lg.append((x.w, 'smem'))
            self.lines.append(t)
    def wait_tag(self, tag):
        idx = max([i for i, (w, tg) in enumerate(self.vm) if tg == tag], default=-1)
        if idx >= 0:
            n = len(self.vm) - 1 - idx; assert n < 64
            self.lines.append(f's_waitcnt vmcnt({n})'); self.vm = self.vm[idx + 1:]
    def text(self): return '\n'.join(self.lines) + '\n'

M32 = 0xFFFFFFFF
def trace_check(lines, wg, wave, maxsteps=200000, verbose=False):
    ins = [Ins(l) for l in lines]
    lab = {x.label: i for i, x in enumerate(ins) if x.label}
    S = {2: wg}; scc = None; pc = 0; vm = []; lg = []; errs = []; n = 0; barriers = 0; counts = {}
    def val(o):
        o = o.strip()
        if o == 'm0': return S.get('m0')
        m = re.match(r'^s(\d+)$', o)
        if m: return S.get(int(m.group(1)))
        try: return int(o, 0) & M32
        except ValueError: return None
    def setv(o, v):
        if o == 'm0': S['m0'] = v; return
        m = re.match(r'^s(\d+)$', o)
        if m: S[int(m.group(1))] = v
        else:
            for k, r in regs_of(o): S.pop(r, None)
    while pc < len(ins):
        x = ins[pc]; n += 1
        if n > maxsteps: errs.append('trace did not end'); break
        counts[x.cls] = counts.get(x.cls, 0) + 1
        if x.cls == 's_endpgm': break
        if x.cls == 's_barrier': barriers += 1
        if x.cls == 's_waitcnt':
            m = re.search(r'vmcnt\((\d+)\)', x.text)
            if m: k = int(m.group(1)); vm = vm[len(vm) - k:] if k < len(vm) else vm; vm = vm if k else []
            m = re.search(r'lgkmcnt\((\d+)\)', x.text)
            if m:
                k = int(m.group(1))
                if k and any(t == 'smem' for _, t, _ in lg): pass
                else: lg = (lg[len(lg) - k:] if k < len(lg) else lg) if k else []
        elif x.cls not in ('label', 'dir'):
            touch = x.r | x.w
            for w, t, src in vm + lg:
                if w & touch: errs.append(f'line {pc}: "{x.text}" touches {sorted(w & touch)[:3]} still loading from "{src}"')
            if x.cls == 'vmem' and x.op not in ('buffer_inv', 'buffer_wbl2'):
                vm.append((x.w, 'vm', x.text))
                if len(vm) > 63: errs.append(f'line {pc}: more than 63 vmem ops in flight')
            if x.cls == 'ds': lg.append((x.w, 'ds', x.text))
            if x.cls == 'smem':
                lg.append((x.w, 'smem', x.text))
                for k, r in x.w: S.pop(r, None)
        if x.cls == 'valu':
            if x.op.startswith('v_readfirstlane') and 'wave' in x.note: setv(x.ops[0], wave)
            else:
                for k, r in sca(x.w): S.pop(r, None)
        if x.cls == 'salu':
            o = x.ops; op = x.op
            a = val(o[1]) if len(o) > 1 else None; b = val(o[2]) if len(o) > 2 else None
            if op.startswith('s_cmp'):
                a, b = val(o[0]), val(o[1])
                if a is None or b is None: scc = None
                else:
                    k = op.split('_')[2]
                    if op.endswith('i32'):
                        a = a - (1 << 32) if a >> 31 else a; b = b - (1 << 32) if b >> 31 else b
                    scc = int({'eq': a == b, 'lg': a != b, 'lt': a < b, 'le': a <= b, 'gt': a > b, 'ge': a >= b}[k])
            elif op in ('s_mov_b32', 's_movk_i32'): setv(o[0], a)
            elif op == 's_cselect_b32': setv(o[0], None if scc is None else (a if scc else b))
            elif op.endswith('b64') or 'saveexec' in op:
                for k, r in x.w: S.pop(r, None)
                if op not in ('s_mov_b64', 's_getpc_b64'): scc = None
            elif a is None or (len(o) > 2 and b is None):
                setv(o[0], None); scc = None if op not in ('s_mul_i32',) else scc
            else:
                f = {'s_add_u32': lambda: a + b, 's_add_i32': lambda: a + b, 's_sub_u32': lambda: a - b, 's_sub_i32': lambda: a - b, 's_mul_i32': lambda: a * b,
                     's_lshl_b32': lambda: a << (b & 31), 's_lshr_b32': lambda: a >> (b & 31), 's_and_b32': lambda: a & b, 's_or_b32': lambda: a | b,
                     's_xor_b32': lambda: a ^ b, 's_min_u32': lambda: min(a, b), 's_max_u32': lambda: max(a, b), 's_mul_hi_u32': lambda: (a * b) >> 32,
                     's_bfe_u32': lambda: (a >> (b & 31)) & ((1 << ((b >> 16) & 127)) - 1)}.get(op)
                if f is None: setv(o[0], None); scc = None
                else:
                    r = f(); setv(o[0], r & M32)
                    if op in ('s_add_u32',): scc = int(r > M32)
                    elif op in ('s_sub_u32',): scc = int(r < 0)
                    elif op not in ('s_mul_i32', 's_mul_hi_u32'): scc = int((r & M32) != 0)
        if x.cls == 'branch':
            if 'taken' in x.note: t = 'nottaken' not in x.note
            elif x.op == 's_branch': t = True
            elif x.op == 's_cbranch_scc1' and scc is not None: t = scc == 1
            elif x.op == 's_cbranch_scc0' and scc is not None: t = scc == 0
            else:
                errs.append(f'line {pc}: unknown branch "{x.text}"'); break
            if t: pc = lab[x.target]; continue
        pc += 1
    return errs, barriers, counts
```

```python
import sys
from asmkit import Emit, insert_nops, trace_check

KN = 'recurrent_scan__ssm_conv_h3__mixer_s_mlp__prompt_kernel'
MB = 1 << 20
C1, C2, C3, CA, CY = 0, 32, 64, 96, 104
NCNT = 112
WS_H, WS_X1, WS_H2, WS_KVT, WS_YT, WS_ST, WS_PROF = 1 * MB, 3 * MB, 5 * MB, 13 * MB, 15 * MB, 17 * MB, 18 * MB
WS_SIZE = 20 * MB
R0, R1, R2 = 0, 65536, 131072
LDS_BYTES = 163840
KIN, VIN, STX, CSX = R2, R2 + 9216, R2 + 17408, R2 + 18432
HB, UB, YB0, YB1, CARR = R2, R2 + 8448, R2, R2 + 17152, R2 + 25344
YIN, EXC, OST = R2, R2 + 8192, R2 + 24576
SX, SK, SV, SW1, SW2, SW3, SW4, SSK, SO, SWS, SDB, SSH, SSD = 8, 12, 16, 20, 24, 28, 32, 36, 40, 44, 48, 52, 56
sW, sTT, sNT, sT3, sN3, sC = 4, 5, 6, 60, 61, 62
SPIN = 400000
GA = -2.0 * 0.7978845608028654 * 1.4426950408889634
GB = GA * 0.044715
import struct
def fbits(x): return '0x%08x' % struct.unpack('<I', struct.pack('<f', x))[0]
def srd(r): return f's[{r}:{r+3}]'
def v(n, c=1): return f'v{n}' if c == 1 else f'v[{n}:{n+c-1}]'
def a(n, c=1): return f'a{n}' if c == 1 else f'a[{n}:{n+c-1}]'
MF = 'v_mfma_f32_16x16x32_bf16'

XF, XN, X1P = 16, 32, 48
vJ, vG, vLN, vR, vCQ = 56, 57, 58, 59, 60
vONE, vZ = 61, 62
vWD = 63
T = 64
vP, vCK = 255, 254

class G:
    def __init__(self, prof=False, stop=99, rot=0):
        self.e = Emit(); self.prof = prof; self.stop = stop; self.rot = rot; self.nst = 0; self.uid = 0
    def stamp(self):
        if self.prof:
            assert self.nst < 20
            r = 80 + self.nst
            self.e.auto = False
            self.e(f's_memrealtime s[76:77]\ns_waitcnt lgkmcnt(0)\ns_mov_b32 s{r}, s76')
            self.e.auto = True
            self.nst += 1
    def lab(self, n):
        self.uid += 1; return f'L_{n}_{self.uid}'

    def signal(self, sidx, tag):
        e = self.e; L = self.lab('sig')
        e.wait_tag(tag)
        e(f's_barrier\ns_cmp_lg_u32 s{sW}, 0\ns_cbranch_scc1 {L}')
        vm = list(e.vm)
        e(f's_mov_b64 exec, 1\nv_mov_b32 {v(vP)}, 1\nbuffer_atomic_add {v(vP)}, {v(vZ)}, {srd(SWS)}, s{sidx} offen sc1\ns_mov_b64 exec, -1')
        e.label(L)
        self.skew = True
    def poll(self, voff, mask, target_v, sbase):
        e = self.e; L = self.lab('poll'); X = self.lab('pollx')
        e(f's_mov_b64 exec, {mask}\ns_mov_b32 s3, 0')
        e.label(L)
        e.auto = False
        e(f's_add_u32 s3, s3, 1\ns_cmp_gt_u32 s3, {SPIN}\ns_cbranch_scc1 {X}')
        e(f'buffer_load_dword {v(vP)}, {voff}, {srd(SWS)}, {sbase} offen sc1\ns_waitcnt vmcnt(0)')
        e(f'v_cmp_gt_u32 vcc, {target_v}, {v(vP)}\ns_cbranch_vccnz {L} ; nottaken')
        e.label(X)
        e.auto = True
        e('s_waitcnt vmcnt(0)\ns_mov_b64 exec, -1')

    def check_issue(self, sbase):
        self.e(f'buffer_load_dword {v(vCK)}, {v(vZ)}, {srd(SWS)}, {sbase} offen sc1')
    def check_verify(self, target, sbase):
        e = self.e; X = self.lab('ck')
        e(f'v_readfirstlane_b32 s3, {v(vCK)}\ns_cmp_ge_u32 s3, {target}\ns_cbranch_scc1 {X} ; taken')
        sv = list(e.vm)
        self.poll(v(vZ), 1, target, sbase)
        e.label(X); e.vm = sv

    def gelu_pairs(self, pairs, tmp):
        e = self.e
        n = len(pairs)
        W = lambda i: tmp + 4 * i
        for i, (acc, cs, nm, A, B, ir, dst) in enumerate(pairs): e(f'v_pk_fma_f32 {v(W(i),2)}, {v(cs,2)}, {v(nm,2)}, {v(acc,2)}')
        for i, p in enumerate(pairs): e(f'v_pk_mul_f32 {v(W(i)+2,2)}, {v(W(i),2)}, {v(W(i),2)}')
        for i, p in enumerate(pairs): e(f'v_pk_fma_f32 {v(W(i)+2,2)}, {v(W(i)+2,2)}, {v(p[4],2)}, {v(p[3],2)}')
        for i, p in enumerate(pairs): e(f'v_pk_mul_f32 {v(W(i)+2,2)}, {v(W(i)+2,2)}, {v(W(i),2)}')
        for i, p in enumerate(pairs): e(f'v_exp_f32 {v(W(i)+2)}, {v(W(i)+2)}\nv_exp_f32 {v(W(i)+3)}, {v(W(i)+3)}')
        for i, p in enumerate(pairs): e(f'v_pk_fma_f32 {v(W(i)+2,2)}, {v(W(i)+2,2)}, {v(p[5],2)}, {v(p[5],2)}')
        for i, p in enumerate(pairs): e(f'v_rcp_f32 {v(W(i)+2)}, {v(W(i)+2)}\nv_rcp_f32 {v(W(i)+3)}, {v(W(i)+3)}')
        for i, p in enumerate(pairs): e(f'v_pk_mul_f32 {v(W(i),2)}, {v(W(i),2)}, {v(W(i)+2,2)}')
        for i, p in enumerate(pairs): e(f'v_cvt_pk_bf16_f32 {v(p[6])}, {v(W(i))}, {v(W(i)+1)}')
    def reduce_sq(self, S, Q, t):
        e = self.e
        e(f'v_permlane32_swap_b32 {v(S)}, {v(Q)}\nv_add_f32 {v(S)}, {v(S)}, {v(Q)}\nv_mov_b32 {v(t)}, {v(S)}')
        e(f'v_permlane16_swap_b32 {v(S)}, {v(t)}\nv_add_f32 {v(S)}, {v(S)}, {v(t)}')
    def token_consts(self, m, R, dst):
        e = self.e
        e(f'v_sub_f32 {v(dst)}, 0, {v(m)}\nv_mul_f32 {v(dst+2)}, {fbits(GA)}, {v(R)}\nv_mul_f32 {v(dst+4)}, {v(R)}, {v(R)}\nv_rcp_f32 {v(dst+6)}, {v(R)}')
        e(f'v_mov_b32 {v(dst+1)}, {v(dst)}\nv_mul_f32 {v(dst+4)}, {v(dst+4)}, {v(dst+2)}\nv_mov_b32 {v(dst+3)}, {v(dst+2)}\nv_mov_b32 {v(dst+7)}, {v(dst+6)}')
        e(f'v_mul_f32 {v(dst+4)}, {fbits(0.044715)}, {v(dst+4)}\nv_mov_b32 {v(dst+5)}, {v(dst+4)}')

    def setup(self):
        e = self.e
        e('s_cmp_ge_u32 s2, 256\ns_cbranch_scc1 L_end')
        self.stamp()
        for r, off in ((SX, 0), (SW1, 56), (SWS, 104), (SDB, 96), (SK, 8), (SV, 16), (SSH, 24), (SSK, 32), (SSD, 40), (SW2, 64), (SW3, 72), (SW4, 80), (SO, 88)):
            e(f's_load_dwordx2 s[{r}:{r+1}], s[0:1], {off}')
        for r, sz in ((SX, 2 * MB), (SW1, MB // 2), (SWS, WS_SIZE), (SDB, 256), (SK, 2 * MB), (SV, 2 * MB), (SSH, 4096), (SSK, 2 * MB), (SSD, 1024),
                      (SW2, MB // 2), (SW3, 1792 * 1024), (SW4, 1792 * 1024), (SO, 2 * MB)):
            e(f's_mov_b32 s{r+2}, {sz}\ns_mov_b32 s{r+3}, 0x20000')
        e(f'''v_lshrrev_b32 v1, 6, v0
        v_and_b32 {v(vLN)}, 63, v0
        s_and_b32 s7, s2, 7
        v_readfirstlane_b32 s{sW}, v1 ; wave
        s_lshr_b32 s3, s2, 3
        s_lshr_b32 s{sTT}, s3, 3
        s_lshl_b32 s63, s7, 2
        s_add_u32 s{sTT}, s{sTT}, s63
        s_and_b32 s{sNT}, s3, 7
        s_lshr_b32 s{sT3}, s7, 1
        s_lshl_b32 s{sT3}, s{sT3}, 2
        s_lshr_b32 s63, s3, 3
        s_add_u32 s{sT3}, s{sT3}, s63
        s_and_b32 s{sN3}, s7, 1
        s_lshl_b32 s{sN3}, s{sN3}, 3
        s_add_u32 s{sN3}, s{sN3}, s{sNT}
        v_and_b32 {v(vJ)}, 15, v0
        v_lshrrev_b32 {v(vG)}, 4, {v(vLN)}
        v_bfe_u32 {v(vR)}, v0, 2, 2
        v_and_b32 {v(vCQ)}, 3, v0
        v_mov_b32 {v(vONE)}, 0x3f803f80
        v_mov_b32 {v(vZ)}, 0''')

    def phase1(self):
        e = self.e
        dX0, dX1, dW0, dW1 = T, T + 1, T + 2, T + 3
        aX = T + 4
        aW = T + 8
        ONES = T + 12
        ACC = T + 16
        CS = T + 32
        S, Q = T + 40, T + 41
        FX, FW = T + 44, T + 60
        TAP = T + 76
        FLG, DSK = T + 80, T + 81
        self.TAP, self.FLG = TAP, FLG
        e(f'''v_lshrrev_b32 v1, 3, {v(vLN)}
        v_and_b32 v2, 7, v0
        v_lshlrev_b32 v1, 10, v1
        v_xor_b32 v3, v2, {v(vG)}
        v_lshl_add_u32 {v(dX0)}, v3, 4, v1
        v_xor_b32 v3, 4, v3
        v_lshl_add_u32 {v(dX1)}, v3, 4, v1
        v_add_u32 {v(dX1)}, 8192, {v(dX1)}
        v_and_b32 v3, 1, {v(vG)}
        v_lshlrev_b32 v3, 1, v3
        v_xor_b32 v3, v3, v2
        v_lshl_add_u32 {v(dW0)}, v3, 4, v1
        v_xor_b32 v3, 4, v3
        v_lshl_add_u32 {v(dW1)}, v3, 4, v1
        s_lshl_b32 s64, s{sTT}, 16
        s_lshl_b32 s63, s{sW}, 14
        s_add_u32 s64, s64, s63
        s_lshl_b32 s65, s{sNT}, 7
        s_add_u32 s65, s65, s63
        s_lshl_b32 s66, s{sW}, 11''')
        e(f's_and_b32 s63, s{sW}, 1\ns_cmp_eq_u32 s63, 0\ns_cselect_b64 vcc, -1, 0\nv_cndmask_b32 {v(vWD)}, {v(dW1)}, {v(dW0)}, vcc')
        e(f'v_add_u32 {v(dW1)}, 8192, {v(dW1)}')
        if self.rot: e(f's_and_b32 s67, s{sTT}, 3\ns_lshl_b32 s67, s67, 1\ns_add_u32 s67, s67, s{sNT}\ns_and_b32 s67, s67, 7')
        else: e('s_mov_b32 s67, 0')
        def issue():
            e(f'''s_lshl_b32 s68, s67, 7
            s_add_u32 s68, s68, s64
            s_lshl_b32 s69, s67, 16
            s_add_u32 s69, s69, s65
            s_mov_b32 m0, s66
            buffer_load_dwordx4 {v(dX0)}, {srd(SX)}, s68 offen lds
            s_add_u32 m0, s66, 1024
            buffer_load_dwordx4 {v(dX1)}, {srd(SX)}, s68 offen lds
            s_add_u32 m0, s66, {R1}
            buffer_load_dwordx4 {v(dW0)}, {srd(SW1)}, s69 offen lds
            s_add_u32 m0, s66, {R1 + 1024}
            buffer_load_dwordx4 {v(dW1)}, {srd(SW1)}, s69 offen lds
            s_add_u32 s66, s66, 8192
            s_add_u32 s67, s67, 1
            s_and_b32 s67, s67, 7''')
        e('s_waitcnt lgkmcnt(0)')
        L = self.lab('init')
        e(f's_cmp_lg_u32 s2, 0\ns_cbranch_scc1 {L}')
        e(f'v_lshlrev_b32 v1, 7, v0\nv_cmp_gt_u32 vcc, {NCNT}, v0\nv_mov_b32 v2, 0x7fffffff\nv_cndmask_b32 v1, v2, v1, vcc')
        e(f'buffer_store_dword {v(vZ)}, v1, {srd(SWS)}, 0 offen sc1\ns_waitcnt vmcnt(0)\ns_barrier')
        e(f'v_mov_b32 v2, 1\nbuffer_store_dword v2, {v(vZ)}, {srd(SDB)}, 0 offen sc1\ns_waitcnt vmcnt(0)')
        e.label(L)
        e(f's_getpc_b64 s[70:71]')
        e.label('L_pc')
        e(f'''s_lshr_b32 s3, s2, 3
        s_lshl_b32 s3, s3, 2
        s_add_u32 s3, s3, s{sW}
        s_mul_i32 s3, s3, (L_end-L_pc+16383)/16384
        v_add_u32 v1, s3, {v(vLN)}
        v_min_u32 v1, (L_end-L_pc)/128, v1
        v_lshlrev_b32 v1, 7, v1
        s_mov_b32 exec_lo, (1<<((L_end-L_pc+16383)/16384))-1
        s_mov_b32 exec_hi, 0
        global_load_dword {v(DSK)}, v1, s[70:71]
        s_mov_b64 exec, -1''')
        issue(); issue()
        e(f'''s_lshr_b32 s63, s{sW}, 1
        s_lshl_b32 s63, s63, 12
        s_and_b32 s3, s{sW}, 1
        s_lshl_b32 s72, s3, 11
        v_lshrrev_b32 v1, 1, {v(vJ)}
        v_xor_b32 v1, v1, {v(vG)}
        v_lshlrev_b32 v1, 4, v1
        v_lshl_add_u32 v1, {v(vJ)}, 7, v1
        v_add_u32 v1, s63, v1
        v_add_u32 {v(aX)}, s72, v1
        s_xor_b32 s72, s72, 2048
        v_add_u32 {v(aX+2)}, s72, v1
        v_xor_b32 {v(aX+1)}, 64, {v(aX)}
        v_xor_b32 {v(aX+3)}, 64, {v(aX+2)}
        v_lshrrev_b32 v1, 1, {v(vR)}
        v_and_b32 v2, 1, {v(vG)}
        v_lshl_or_b32 v1, v2, 1, v1
        v_lshlrev_b32 v1, 1, v1
        v_lshrrev_b32 v2, 1, {v(vCQ)}
        v_xor_b32 v1, v1, v2
        v_lshlrev_b32 v1, 4, v1
        v_and_b32 v2, 1, {v(vCQ)}
        v_lshl_or_b32 v1, v2, 3, v1
        v_lshl_add_u32 v2, {v(vG)}, 3, {v(vR)}
        v_lshl_add_u32 v15, v2, 7, v1
        s_lshl_b32 s72, s3, 6
        v_xor_b32 {v(aW)}, s72, v15
        v_add_u32 {v(aW)}, {R1}, {v(aW)}
        v_xor_b32 {v(aW+1)}, 32, {v(aW)}''')
        self.vWstd = 15
        for i in range(4): e(f'v_mov_b32 {v(ONES+i)}, {v(vONE)}')
        for i in range(26): e(f'v_mov_b32 {v(ACC+i)}, 0')
        e(f's_mov_b32 s{sC}, 0')
        e.label('L_p1')
        e.auto = False
        e(f's_waitcnt vmcnt(4)\ns_barrier\ns_cmp_ge_u32 s{sC}, 6\ns_cbranch_scc1 L_p1alt')
        issue()
        e.label('L_p1c')
        for ks in range(2):
            for sl in range(2): e(f'ds_read_b128 {v(FX+8*ks+4*sl,4)}, {v(aX+2*sl+ks)}')
            for b in range(2):
                for hh in range(2): e(f'ds_read_b64_tr_b16 {v(FW+8*ks+4*b+2*hh,2)}, {v(aW+b)} offset:{(32*ks+4*hh)*128}')
        for ks in range(2):
            x0, x1, w0, w1 = FX + 8 * ks, FX + 8 * ks + 4, FW + 8 * ks, FW + 8 * ks + 4
            e(f's_waitcnt lgkmcnt({8 - 6*ks})')
            e(f'{MF} {v(ACC,4)}, {v(w0,4)}, {v(x0,4)}, {v(ACC,4)}')
            e(f'v_dot2_f32_bf16 {v(S)}, {v(x0)}, {v(vONE)}, {v(S)}\nv_dot2_f32_bf16 {v(Q)}, {v(x0)}, {v(x0)}, {v(Q)}')
            e(f'{MF} {v(ACC+8,4)}, {v(w0,4)}, {v(x1,4)}, {v(ACC+8,4)}')
            e(f'v_dot2_f32_bf16 {v(S)}, {v(x0+1)}, {v(vONE)}, {v(S)}\nv_dot2_f32_bf16 {v(Q)}, {v(x0+1)}, {v(x0+1)}, {v(Q)}')
            e(f'{MF} {v(CS,4)}, {v(w0,4)}, {v(ONES,4)}, {v(CS,4)}')
            e(f's_waitcnt lgkmcnt({6 - 6*ks})')
            e(f'{MF} {v(ACC+4,4)}, {v(w1,4)}, {v(x0,4)}, {v(ACC+4,4)}')
            e(f'v_dot2_f32_bf16 {v(S)}, {v(x0+2)}, {v(vONE)}, {v(S)}\nv_dot2_f32_bf16 {v(Q)}, {v(x0+2)}, {v(x0+2)}, {v(Q)}')
            e(f'{MF} {v(ACC+12,4)}, {v(w1,4)}, {v(x1,4)}, {v(ACC+12,4)}')
            e(f'v_dot2_f32_bf16 {v(S)}, {v(x0+3)}, {v(vONE)}, {v(S)}\nv_dot2_f32_bf16 {v(Q)}, {v(x0+3)}, {v(x0+3)}, {v(Q)}')
            e(f'{MF} {v(CS+4,4)}, {v(w1,4)}, {v(ONES,4)}, {v(CS+4,4)}')
        for r in (aX, aX + 1, aX + 2, aX + 3, aW, aW + 1): e(f'v_add_u32 {v(r)}, 8192, {v(r)}')
        e(f's_add_u32 s{sC}, s{sC}, 1\ns_cmp_lt_u32 s{sC}, 8\ns_cbranch_scc1 L_p1\ns_branch L_p1done')
        e.label('L_p1alt')
        e(f'''v_lshrrev_b32 v1, 3, {v(vLN)}
        v_and_b32 v2, 7, v0
        v_lshlrev_b32 v1, 10, v1
        v_lshl_add_u32 v1, v2, 4, v1
        s_lshl_b32 s68, s{sTT}, 16
        s_lshl_b32 s69, s{sNT}, 7
        s_add_u32 s68, s68, s69
        s_cmp_eq_u32 s{sC}, 7
        s_cbranch_scc1 L_p1alt2
        s_lshl_b32 s69, s{sW}, 14
        s_add_u32 s68, s68, s69
        s_lshl_b32 s63, s{sW}, 11
        s_lshl_b32 s3, s{sW}, 5''')
        for i in range(2):
            e(f's_add_u32 s72, s3, {16*(i+1)}\ns_and_b32 s72, s72, 0x70\nv_xor_b32 v2, s72, v1\ns_add_u32 m0, s63, {KIN + 1024*(i+1)}')
            e(f'buffer_load_dwordx4 v2, {srd(SK)}, s68 offen lds')
            e(f's_add_u32 s72, s3, {16*i}\nv_xor_b32 v2, s72, v1\ns_add_u32 m0, s63, {VIN + 1024*i}')
            e(f'buffer_load_dwordx4 v2, {srd(SV)}, s68 offen lds')
            if i == 0: e('s_add_u32 s68, s68, 8192')
        e('s_branch L_p1c')
        e.label('L_p1alt2')
        e(f'''s_cmp_eq_u32 s{sTT}, 0
        s_cselect_b32 s69, 0x7ff00000, 0
        s_cselect_b32 s72, 0, 8192
        s_sub_u32 s68, s68, s72
        v_add_u32 v1, s69, v1
        s_mov_b32 m0, {KIN}
        v_lshrrev_b32 v2, 3, {v(vLN)}
        buffer_load_dwordx4 v1, {srd(SK)}, s68 offen lds
        v_lshlrev_b32 v2, 4, v2
        s_lshl_b32 s68, s{sNT}, 9
        s_lshl_b32 s69, s{sW}, 7
        s_add_u32 s68, s68, s69
        buffer_load_dwordx4 {v(TAP,4)}, v2, {srd(SSH)}, s68 offen
        buffer_load_dword {v(FLG)}, {v(vZ)}, {srd(SDB)}, 0 offen sc1
        buffer_load_dword {v(DSK)}, {v(vZ)}, {srd(SDB)}, 0 offen sc1
        s_branch L_p1c''')
        e.label('L_p1done')
        e.vm = [(set(), 'kv'), ({('v', TAP + i) for i in range(4)}, None), ({('v', FLG)}, None), ({('v', DSK)}, None)]; e.lg = []
        e.auto = True
        self.stamp()
        t0 = FX
        self.reduce_sq(S, Q, t0)
        e(f'''v_mov_b32 {v(Q)}, {v(S)}
        v_permlane32_swap_b32 {v(S)}, {v(Q)}
        v_mul_f32 {v(S)}, {fbits(1/512)}, {v(S)}
        v_mul_f32 {v(t0)}, {v(S)}, {v(S)}
        v_mov_b32 {v(t0+1)}, {fbits(1/512)}
        v_fma_f32 {v(Q)}, {v(Q)}, {v(t0+1)}, -{v(t0)}
        v_max_f32 {v(Q)}, 0, {v(Q)}
        v_add_f32 {v(t0)}, {fbits(1e-5)}, {v(Q)}
        v_rsq_f32 {v(t0+2)}, {v(t0)}
        v_rcp_f32 {v(t0)}, {v(t0)}
        v_mov_b32 {v(t0+1)}, {fbits(1e-5)}
        v_fma_f32 {v(t0)}, {v(Q)}, {v(t0)}, {v(t0+1)}
        v_rsq_f32 {v(t0)}, {v(t0)}
        s_lshl_b32 s63, s{sW}, 7
        s_add_u32 s63, s63, {STX}
        v_lshlrev_b32 v2, 3, {v(vJ)}
        v_add_u32 v2, s63, v2
        v_mul_f32 {v(Q)}, {v(t0)}, {v(t0+2)}
        ds_write_b64 v2, {v(S,2)}''')
        R1v = t0 + 2
        e(f'''s_sub_u32 s63, s{sNT}, s67
        s_and_b32 s63, s63, 7
        s_lshl_b32 s63, s63, 13
        s_lshl_b32 s3, s{sW}, 11
        s_add_u32 s63, s63, s3
        v_lshrrev_b32 v3, 1, {v(vJ)}
        v_lshrrev_b32 v4, 1, {v(vG)}
        v_xor_b32 v3, v3, v4
        v_lshlrev_b32 v3, 4, v3
        v_and_b32 v4, 1, {v(vG)}
        v_lshl_or_b32 v3, v4, 3, v3
        v_lshl_add_u32 v3, {v(vJ)}, 7, v3
        v_add_u32 v3, s63, v3''')
        XR = FW
        for t in range(4):
            e(f'v_xor_b32 v4, {32*t}, v3\nds_read_b64 {v(XR+2*t,2)}, v4')
        e(f'v_xor_b32 v2, 128, v2\ns_waitcnt lgkmcnt(0)\ns_barrier')
        OT = t0 + 4
        e(f'ds_read_b64 {v(OT,2)}, v2')
        K0, K1 = t0 + 8, FW + 8
        self.token_consts(S, Q, K0)
        self.token_consts(OT, OT + 1, K1)
        PK = T + 84; TMP = T + 92
        e(f'''s_and_b32 s3, s{sW}, 1
        s_lshl_b32 s63, s{sNT}, 1
        s_add_u32 s63, s63, s3
        s_lshl_b32 s63, s63, 17
        s_lshl_b32 s3, s{sTT}, 10
        s_add_u32 s63, s63, s3
        s_add_u32 s63, s63, {WS_H}
        s_lshl_b32 s3, s{sW}, 8
        v_lshlrev_b32 v1, 15, {v(vG)}
        v_lshl_add_u32 v1, {v(vJ)}, 4, v1
        v_add_u32 v5, s3, v1
        v_xor_b32 v6, 256, v5''')
        for sl, K in ((0, K0), (1, K1)):
            self.gelu_pairs([(ACC + 8 * sl + 2 * p, CS + 2 * p, K, K + 2, K + 4, K + 6, PK + 4 * sl + p) for p in range(4)], TMP)
            e(f'buffer_store_dwordx4 {v(PK+4*sl,4)}, {v(5+sl)}, {srd(SWS)}, s63 offen sc1', tag='st')
        self.p1 = (XR, S, R1v)

    def w2_dma(self, lo, hi):
        e = self.e
        for i in range(lo, hi):
            e(f's_add_u32 m0, s73, {R1 + 4096*i}\nbuffer_load_dwordx4 v7, {srd(SW2)}, s74 offen lds\ns_add_u32 s74, s74, 32768', tag='w2')
    def w3_dma(self, step_lo, n):
        e = self.e
        for q in range(n):
            st = step_lo + 4 * q
            e(f's_add_u32 s63, s{sW}, {st}\ns_mul_i32 s72, s63, {32*3584}\ns_mul_i32 s3, s{sN3}, 224\ns_add_u32 s72, s72, s3\ns_mul_i32 s63, s{sW}, 7168')
            base = (R0 if st < 8 else R1) + (st % 8) * 7168
            for i in range(7):
                e(f's_add_u32 m0, s63, {base + 1024*i}\nbuffer_load_dwordx4 {v(8+i)}, {srd(SW3)}, s72 offen lds', tag='w3')

    def window1(self):
        e = self.e
        XR, S, R1v = self.p1
        e(f'''v_lshrrev_b32 v1, 3, {v(vLN)}
        v_and_b32 v2, 7, v0
        v_and_b32 v3, 6, v1
        v_xor_b32 v2, v2, v3
        v_lshlrev_b32 v1, 10, v1
        v_lshl_add_u32 v7, v2, 4, v1
        s_lshl_b32 s73, s{sW}, 10
        s_lshl_b32 s74, s{sW}, 13
        s_lshl_b32 s3, s{sNT}, 7
        s_add_u32 s74, s74, s3''')
        self.w2_dma(0, 6)
        L = self.lab('ini'); X = self.lab('inix')
        e(f'v_readfirstlane_b32 s3, {v(self.FLG)}\ns_cmp_lg_u32 s3, 0\ns_cbranch_scc1 {X} ; taken')
        sv = list(e.vm)
        e('s_mov_b32 s63, 0')
        e.label(L); e.auto = False
        e(f's_add_u32 s63, s63, 1\ns_cmp_gt_u32 s63, {SPIN}\ns_cbranch_scc1 {X}')
        e(f'buffer_load_dword v1, {v(vZ)}, {srd(SDB)}, 0 offen sc1\ns_waitcnt vmcnt(0)\nv_readfirstlane_b32 s3, v1\ns_cmp_eq_u32 s3, 0\ns_cbranch_scc1 {L} ; nottaken')
        e.label(X); e.auto = True; e.vm = sv
        e(f's_lshl_b32 s75, s{sTT}, 7\ns_add_u32 s75, s75, {C1*128}')
        self.signal(75, 'st')
        self.stamp()
        e.vm = [(set(), 'w2')] * 7
        self.w2_dma(6, 16)
        for i in range(8):
            e(f'v_lshlrev_b32 {v(XF+2*i)}, 16, {v(XR+i)}\nv_and_b32 {v(XF+2*i+1)}, 0xffff0000, {v(XR+i)}')
        for i in range(16): e(f'v_sub_f32 {v(XN+i)}, {v(XF+i)}, {v(S)}')
        for i in range(16): e(f'v_mul_f32 {v(XN+i)}, {v(XN+i)}, {v(R1v)}')
        TAP = self.TAP
        KR, VR, TP, KF, VF, AC, PK = T, T + 12, T + 20, T + 28, T + 84, T + 100, T + 116
        e(f'''v_and_b32 v1, 7, v0
        v_lshrrev_b32 v2, 3, {v(vLN)}
        v_lshrrev_b32 v3, 2, v2
        s_lshl_b32 s3, s{sW}, 1
        v_add_u32 v3, s3, v3
        v_and_b32 v2, 3, v2
        v_lshlrev_b32 v2, 2, v2
        v_lshl_add_u32 v2, v1, 10, v2
        v_xor_b32 v4, v3, v1
        v_lshl_add_u32 v4, v4, 4, v2
        v_add_u32 v5, 1, v1
        v_and_b32 v5, 7, v5
        v_xor_b32 v5, v3, v5
        v_lshl_add_u32 v5, v5, 4, v2
        v_add_u32 v4, {R2}, v4
        v_add_u32 v5, {R2}, v5''')
        for i in range(11): e(f'ds_read_b32 {v(KR+i)}, {v(4 if i < 3 else 5)} offset:{KIN - R2 + (5+i)*128}')
        for i in range(8): e(f'ds_read_b32 {v(VR+i)}, v4 offset:{VIN - R2 + i*128}')
        for j in range(4):
            for ch in range(2):
                src = TAP + 2 * ch + (j >> 1)
                e(f'v_and_b32 {v(TP+2*j+ch)}, 0xffff0000, {v(src)}' if j & 1 else f'v_lshlrev_b32 {v(TP+2*j+ch)}, 16, {v(src)}')
        for i in range(11): e(f'v_lshlrev_b32 {v(KF+2*i)}, 16, {v(KR+i)}\nv_and_b32 {v(KF+2*i+1)}, 0xffff0000, {v(KR+i)}')
        for i in range(8): e(f'v_lshlrev_b32 {v(VF+2*i)}, 16, {v(VR+i)}\nv_and_b32 {v(VF+2*i+1)}, 0xffff0000, {v(VR+i)}')
        for t in range(8): e(f'v_pk_mul_f32 {v(AC+2*t,2)}, {v(KF+2*t,2)}, {v(TP+6,2)}')
        for j in (2, 1, 0):
            for t in range(8): e(f'v_pk_fma_f32 {v(AC+2*t,2)}, {v(KF+2*(t+3-j),2)}, {v(TP+2*j,2)}, {v(AC+2*t,2)}')
        for t in range(8): e(f'v_pk_mul_f32 {v(AC+2*t,2)}, {v(AC+2*t,2)}, {v(VF+2*t,2)}')
        for ch in range(2):
            for p in range(4): e(f'v_cvt_pk_bf16_f32 {v(PK+4*ch+p)}, {v(AC+4*p+ch)}, {v(AC+4*p+2+ch)}')
        e(f'''v_lshrrev_b32 v2, 3, {v(vLN)}
        v_lshlrev_b32 v2, 13, v2
        v_lshl_add_u32 v2, v1, 4, v2
        v_add_u32 v3, 4096, v2
        s_lshl_b32 s63, s{sNT}, 18
        s_lshl_b32 s3, s{sW}, 16
        s_add_u32 s63, s63, s3
        s_lshl_b32 s3, s{sTT}, 7
        s_add_u32 s63, s63, s3
        s_add_u32 s63, s63, {WS_KVT}''')
        e(f'buffer_store_dwordx4 {v(PK,4)}, v2, {srd(SWS)}, s63 offen sc1', tag='st')
        e(f'buffer_store_dwordx4 {v(PK+4,4)}, v3, {srd(SWS)}, s63 offen sc1', tag='st')
        for i in range(7):
            e(f'v_add_u32 v1, {64*i}, {v(vLN)}\nv_mul_u32_u24 v2, 4682, v1\nv_lshrrev_b32 v2, 16, v2\nv_mul_u32_u24 v3, 14, v2\nv_sub_u32 v3, v1, v3')
            e(f'v_mul_u32_u24 v2, 3584, v2\nv_lshl_add_u32 {v(8+i)}, v3, 4, v2')
        e(f's_lshl_b32 s75, s{sNT}, 7\ns_add_u32 s75, s75, {CA*128}')
        self.signal(75, 'st')
        e.vm = [(set(), None)]
        self.w3_dma(0, 1)
        self.stamp()

    def phase2(self):
        e = self.e
        aW, dH, ACC, FH, FW = T, T + 4, T + 8, T + 24, T + 56
        e(f'''v_lshl_add_u32 v1, {v(vG)}, 2, {v(vR)}
        v_and_b32 v2, 6, v1
        v_lshrrev_b32 v3, 1, {v(vCQ)}
        v_xor_b32 v2, v2, v3
        v_lshlrev_b32 v2, 4, v2
        v_and_b32 v3, 1, {v(vCQ)}
        v_lshl_or_b32 v2, v3, 3, v2
        v_lshl_add_u32 v1, v1, 7, v2
        v_add_u32 {v(aW)}, {R1}, v1
        s_lshl_b32 s63, s{sTT}, 6
        s_lshl_b32 s3, s{sW}, 4
        s_add_u32 s63, s63, s3
        v_add_u32 v1, s63, {v(vJ)}
        v_lshlrev_b32 v2, 15, {v(vG)}
        v_mov_b32 v4, 0x7ff00000
        s_movk_i32 s3, 2048''')
        for t in range(1, 4): e(f'v_xor_b32 {v(aW+t)}, {32*t}, {v(aW)}')
        for g, d in enumerate((-1, 1, -2, 2)):
            e(f'v_add_u32 v3, {d}, v1\nv_cmp_gt_u32 vcc, s3, v3\nv_lshl_add_u32 v3, v3, 4, v2\nv_cndmask_b32 {v(dH+g)}, v4, v3, vcc')
        e(f'''v_add_u32 v2, s{sTT}, {v(vLN)}
        v_subrev_u32 v2, 1, v2
        v_max_i32 v2, 0, v2
        v_min_i32 v2, 31, v2
        v_lshlrev_b32 v2, 7, v2''')
        e.wait_tag('w2')
        L = self.lab('p2w')
        e(f's_cmp_lg_u32 s{sW}, 0\ns_cbranch_scc1 {L}')
        self.poll('v2', 7, 8, str(C1 * 128) if C1 else '0')
        e.label(L)
        e('s_barrier')
        e.vm = [(set(), 'w3')] * 7
        self.stamp()
        e(f's_mov_b32 s63, {WS_H}')
        def ldh(s): e(f'buffer_load_dwordx4 {v(FH+4*(s%8),4)}, {v(dH+s//4)}, {srd(SWS)}, s63 offen sc1\ns_add_u32 s63, s63, 131072')
        def ldw(s):
            for t in range(4):
                for hh in range(2): e(f'ds_read_b64_tr_b16 {v(FW+16*(s%2)+4*t+2*hh,2)}, {v(aW+t)} offset:{(32*s+16*hh)*128}')
        for s in range(8): ldh(s)
        ldw(0)
        for s in range(16):
            if s < 15: ldw(s + 1)
            for t in range(4):
                c = v(ACC + 4 * t, 4) if s else '0'
                e(f'{MF} {v(ACC+4*t,4)}, {v(FW+16*(s%2)+4*t,4)}, {v(FH+4*(s%8),4)}, {c}')
            if s < 8: ldh(s + 8)
        self.stamp()
        for p in range(8): e(f'v_pk_add_f32 {v(ACC+2*p,2)}, {v(ACC+2*p,2)}, {v(XN+2*p,2)}')
        for p in range(8): e(f'v_cvt_pk_bf16_f32 {v(X1P+p)}, {v(ACC+2*p)}, {v(ACC+2*p+1)}')
        e(f'''s_lshl_b32 s63, s{sNT}, 18
        s_lshl_b32 s3, s{sTT}, 10
        s_add_u32 s63, s63, s3
        s_lshl_b32 s3, s{sW}, 8
        s_add_u32 s63, s63, s3
        s_add_u32 s63, s63, {WS_X1}
        s_add_u32 s64, s63, 131072
        v_lshlrev_b32 v1, 15, {v(vG)}
        v_lshl_add_u32 v1, {v(vJ)}, 4, v1''')
        e(f'buffer_store_dwordx4 {v(X1P,4)}, v1, {srd(SWS)}, s63 offen sc1', tag='st')
        e(f'buffer_store_dwordx4 {v(X1P+4,4)}, v1, {srd(SWS)}, s64 offen sc1', tag='st')
        S, Q = FH, FH + 1
        e(f'v_dot2_f32_bf16 {v(S)}, {v(X1P)}, {v(vONE)}, 0\nv_dot2_f32_bf16 {v(Q)}, {v(X1P)}, {v(X1P)}, 0')
        for p in range(1, 8): e(f'v_dot2_f32_bf16 {v(S)}, {v(X1P+p)}, {v(vONE)}, {v(S)}\nv_dot2_f32_bf16 {v(Q)}, {v(X1P+p)}, {v(X1P+p)}, {v(Q)}')
        e('s_nop 2')
        self.reduce_sq(S, Q, FH + 2)
        e(f'''s_lshl_b32 s63, s{sNT}, 14
        s_lshl_b32 s3, s{sTT}, 9
        s_add_u32 s63, s63, s3
        s_lshl_b32 s3, s{sW}, 7
        s_add_u32 s63, s63, s3
        s_add_u32 s63, s63, {WS_ST}
        v_lshrrev_b32 v2, 1, {v(vG)}
        v_lshlrev_b32 v2, 6, v2
        v_lshl_add_u32 v2, {v(vJ)}, 2, v2
        s_mov_b32 exec_lo, 0xffff
        s_mov_b32 exec_hi, 0xffff''')
        e(f'buffer_store_dword {v(S)}, v2, {srd(SWS)}, s63 offen sc1', tag='st')
        e(f's_mov_b64 exec, -1\ns_lshl_b32 s75, s{sTT}, 7\ns_add_u32 s75, s75, {C2*128}')
        self.signal(75, 'st')
        self.stamp()

    def window2(self):
        e = self.e
        e.vm = [(set(), None)]
        self.w3_dma(4, 3)
        aW = T
        self.aW3 = aW
        e(f'''v_lshl_add_u32 v1, {v(vG)}, 2, {v(vR)}
        v_mul_u32_u24 v1, 224, v1
        v_lshl_add_u32 {v(aW)}, {v(vCQ)}, 3, v1
        v_add_u32 {v(aW+1)}, {R1}, {v(aW)}''')
        ONES, CA_, F = T + 4, T + 8, T + 16
        for i in range(4): e(f'v_mov_b32 {v(ONES+i)}, {v(vONE)}')
        e(f'''s_lshl_b32 s3, s{sW}, 5
        s_add_u32 s63, s3, 128
        s_min_u32 s63, s63, 192
        v_add_u32 v1, s3, {v(aW)}
        v_add_u32 v2, s63, {v(aW)}
        v_add_u32 v3, {R1}, v1
        v_add_u32 v4, {R1}, v2
        s_waitcnt vmcnt(0)
        s_barrier''')
        def rd(s):
            for t in range(2):
                for hh in range(2): e(f'ds_read_b64_tr_b16 {v(F+8*(s%4)+4*t+2*hh,2)}, {v(1+t+(2 if s >= 8 else 0))} offset:{(s%8)*7168+hh*3584}')
        for s in range(3): rd(s)
        for s in range(16):
            if s + 3 < 16: rd(s + 3)
            for t in range(2):
                c = v(CA_ + 4 * t, 4) if s else '0'
                e(f'{MF} {v(CA_+4*t,4)}, {v(F+8*(s%4)+4*t,4)}, {v(ONES,4)}, {c}')
        e(f'''v_lshlrev_b32 v1, 4, {v(vG)}
        s_lshl_b32 s3, s3, 1
        s_lshl_b32 s63, s63, 1
        v_add_u32 v2, s63, v1
        v_add_u32 v1, s3, v1
        v_add_u32 v1, {CSX}, v1
        v_add_u32 v2, {CSX}, v2
        s_mov_b32 exec_lo, 0x00010001
        s_mov_b32 exec_hi, 0x00010001
        ds_write_b128 v1, {v(CA_,4)}
        ds_write_b128 v2, {v(CA_+4,4)}
        s_mov_b64 exec, -1
        v_lshlrev_b32 v1, 4, {v(vG)}
        v_add_u32 v1, {CSX}, v1
        s_waitcnt lgkmcnt(0)
        s_barrier''')
        self.CS3 = T + 4
        for t in range(7): e(f'ds_read_b128 {v(self.CS3+4*t,4)}, v1 offset:{64*t}')
        self.stamp()

    def phase3(self):
        e = self.e
        aW = self.aW3; CS = self.CS3
        dX, aC, aN = T + 2, T + 32, T + 33
        ACC, FX, FW, ST = T + 36, T + 92, T + 124, T + 180
        e(f'''s_lshl_b32 s63, s{sT3}, 7
        s_lshl_b32 s3, s{sW}, 5
        s_add_u32 s63, s63, s3
        v_add_u32 v1, s63, {v(vJ)}
        v_lshlrev_b32 v2, 15, {v(vG)}
        v_lshl_add_u32 {v(dX)}, v1, 4, v2
        s_lshl_b32 s64, s63, 3
        s_add_u32 s64, s64, {WS_ST}
        v_lshlrev_b32 v2, 15, {v(vG)}
        v_lshl_add_u32 v2, {v(vJ)}, 2, v2
        v_add_u32 v3, 16384, v2
        s_lshl_b32 s65, s{sT3}, 1
        s_lshr_b32 s3, s{sW}, 1
        s_add_u32 s65, s65, s3
        s_lshl_b32 s65, s65, 7
        s_add_u32 s65, s65, {C2*128}
        v_mov_b32 {v(aC)}, {v(aW)}''')
        for i in range(56): e(f'v_mov_b32 {v(ACC+i)}, 0')
        def ldw(buf, reg, off):
            for t in range(7):
                for hh in range(2): e(f'ds_read_b64_tr_b16 {v(FW+28*buf+4*t+2*hh,2)}, {v(reg)} offset:{off+hh*3584+32*t}')
        ldw(0, aC, 0)
        self.poll(v(vZ), 1, 8, 's65')
        self.stamp()
        for a_ in range(2):
            for h in range(2):
                for q in range(2): e(f'buffer_load_dword {v(ST+4*a_+2*h+q)}, {v(2+h)}, {srd(SWS)}, s64 offen offset:{128*a_+64*q} sc1')
        e(f's_mov_b32 s63, {WS_X1}')
        def ldx(u):
            for a_ in range(2): e(f'buffer_load_dwordx4 {v(FX+8*u+4*a_,4)}, {v(dX)}, {srd(SWS)}, s63 offen offset:{256*a_} sc1')
            e('s_add_u32 s63, s63, 131072')
        for u in range(4): ldx(u)
        e(f's_mov_b32 s{sC}, 0\ns_mov_b32 s66, 28672')
        e.label('L_p3')
        e.auto = False
        e(f's_cmp_eq_u32 s{sC}, 1\ns_cselect_b32 s3, {R1 - 28672}, s66\nv_add_u32 {v(aN)}, s3, {v(aC)}')
        for u in range(4):
            e('s_waitcnt vmcnt(6) lgkmcnt(0)')
            k = 0
            rds = [(t, hh) for t in range(7) for hh in range(2)]
            for t in range(7):
                for a_ in range(2):
                    e(f'{MF} {v(ACC+28*a_+4*t,4)}, {v(FW+28*(u%2)+4*t,4)}, {v(FX+8*u+4*a_,4)}, {v(ACC+28*a_+4*t,4)}')
                    tt_, hh = rds[k]; k += 1
                    reg, off = (aC, (u + 1) * 7168) if u < 3 else (aN, 0)
                    e(f'ds_read_b64_tr_b16 {v(FW+28*((u+1)%2)+4*tt_+2*hh,2)}, {v(reg)} offset:{off+hh*3584+32*tt_}')
            ldx(u)
        e(f'v_mov_b32 {v(aC)}, {v(aN)}\ns_add_u32 s{sC}, s{sC}, 1\ns_cmp_lt_u32 s{sC}, 4')
        e(f's_cbranch_scc0 L_p3done\ns_cmp_lt_u32 s{sC}, 3\ns_cbranch_scc1 L_p3\ns_mov_b32 s63, {WS_SIZE}\ns_branch L_p3')
        e.label('L_p3done')
        e('s_waitcnt vmcnt(0) lgkmcnt(0)')
        e.auto = True
        self.stamp()
        e(f's_lshr_b32 s3, s2, 5\ns_lshl_b32 s3, s3, 7\ns_add_u32 s72, s3, {CA*128}\ns_add_u32 s73, s3, {CY*128}')
        self.check_issue('s72')
        e('s_barrier')
        e(f'''s_lshl_b32 s66, s{sW}, 13
        s_lshl_b32 s3, s{sNT}, 7
        s_add_u32 s66, s66, s3
        s_add_u32 s67, s66, {896*1024}
        s_lshl_b32 s68, s{sW}, 10''')
        K = [FX, FX + 8]
        for a_ in range(2):
            s_, q_ = ST + 4 * a_, ST + 4 * a_ + 1
            e(f'v_add_f32 {v(s_)}, {v(s_)}, {v(s_+2)}\nv_add_f32 {v(q_)}, {v(q_)}, {v(q_+2)}')
            self.reduce_sq(s_, q_, s_ + 2)
            e(f'''v_mov_b32 {v(q_)}, {v(s_)}
            v_permlane32_swap_b32 {v(s_)}, {v(q_)}
            v_mul_f32 {v(s_)}, {fbits(1/512)}, {v(s_)}
            v_mul_f32 {v(s_+2)}, {v(s_)}, {v(s_)}
            v_mov_b32 {v(s_+3)}, {fbits(1/512)}
            v_fma_f32 {v(q_)}, {v(q_)}, {v(s_+3)}, -{v(s_+2)}
            v_max_f32 {v(q_)}, 0, {v(q_)}
            v_add_f32 {v(q_)}, {fbits(1e-5)}, {v(q_)}
            v_rsq_f32 {v(q_)}, {v(q_)}''')
            self.token_consts(s_, q_, K[a_])
        e(f'''s_mul_i32 s63, s{sN3}, {14*32768}
        s_lshl_b32 s3, s{sT3}, 11
        s_add_u32 s63, s63, s3
        s_lshl_b32 s3, s{sW}, 9
        s_add_u32 s63, s63, s3
        s_add_u32 s63, s63, {WS_H2}
        v_lshrrev_b32 v1, 1, {v(vG)}
        v_lshlrev_b32 v1, 15, v1
        v_and_b32 v2, 31, v0
        v_lshl_add_u32 v1, v2, 4, v1''')
        TMP, PK = FW, FW + 16
        self.w4n = 0
        for t in range(7):
            pk = PK + 4 * (t % 2)
            self.gelu_pairs([(ACC + 28 * a_ + 4 * t + 2 * p, CS + 4 * t + 2 * p, K[a_], K[a_] + 2, K[a_] + 4, K[a_] + 6, pk + 2 * a_ + p)
                             for a_ in range(2) for p in range(2)], TMP)
            e(f'v_permlane16_swap_b32 {v(pk)}, {v(pk+2)}\nv_permlane16_swap_b32 {v(pk+1)}, {v(pk+3)}')
            e(f'buffer_store_dwordx4 {v(pk,4)}, v1, {srd(SWS)}, s63 offen sc1\ns_add_u32 s63, s63, 65536', tag='st')
            self.w4_dma(2 if t < 6 else 1)
        e(f's_lshl_b32 s75, s{sT3}, 7\ns_add_u32 s75, s75, {C3*128}')
        self.signal(75, 'st')
        self.stamp()
    def w4_dma(self, nsteps):
        e = self.e
        for _ in range(nsteps):
            sg = self.w4n; self.w4n += 1
            slot = sg if sg < 16 else sg - 16
            e(f's_add_u32 m0, s68, {slot*8192}\nbuffer_load_dwordx4 {v(vWD)}, {srd(SW4)}, s66 offen lds\ns_add_u32 s66, s66, 32768', tag='w4')
            e(f's_add_u32 m0, s68, {slot*8192+4096}\nbuffer_load_dwordx4 {v(vWD)}, {srd(SW4)}, s67 offen lds\ns_add_u32 s67, s67, 32768', tag='w4')

    def window3(self):
        e = self.e
        e.vm = [(set(), 'w4')] * 3
        self.w4_dma(16 - self.w4n)
        e(f'''v_lshlrev_b32 v1, 4, {v(vLN)}
        s_lshl_b32 s63, s2, 13
        s_lshl_b32 s3, s{sW}, 11
        s_add_u32 s63, s63, s3
        s_lshr_b32 s64, s{sW}, 1
        s_and_b32 s65, s{sW}, 1
        s_lshl_b32 s69, s64, 5
        s_add_u32 s69, s69, s3
        s_lshl_b32 s70, s64, 8
        s_add_u32 s70, s70, s3
        s_lshl_b32 s71, s2, 2
        s_lshl_b32 s3, s64, 1
        s_add_u32 s71, s71, s3''')
        DV = T + 4
        e(f'buffer_load_ushort {v(DV)}, {v(vZ)}, {srd(SSD)}, s71 offen')
        for i in range(2): e(f's_add_u32 m0, s69, {HB + 32}\nbuffer_load_dwordx4 v1, {srd(SSK)}, s63 offen offset:{1024*i} lds', tag='cv')
        e(f's_add_u32 s63, s63, {WS_KVT}')
        self.check_verify(32, 's72')
        for i in range(2): e(f's_add_u32 m0, s70, {UB + 256}\nbuffer_load_dwordx4 v1, {srd(SWS)}, s63 offen offset:{1024*i} sc1 lds', tag='cv')
        e(f'''v_mov_b32 v4, 0
        v_mov_b32 v5, 0
        v_mov_b32 v6, 0
        v_mov_b32 v7, 0
        s_mul_i32 s3, s64, 4352
        v_add_u32 v2, s3, v1
        v_add_u32 v2, {UB}, v2
        s_mul_i32 s3, s64, 4128
        v_add_u32 v3, s3, v1
        v_add_u32 v3, {HB}, v3
        s_mov_b64 exec, 0xffff
        ds_write_b128 v2, v[4:7]
        s_mov_b64 exec, 3
        ds_write_b128 v3, v[4:7]
        s_mul_i32 s3, s64, 528
        v_mov_b32 v2, s3
        v_add_u32 v2, {CARR}, v2
        s_mov_b64 exec, 1
        ds_write_b128 v2, v[4:7]
        s_mov_b64 exec, -1''')
        aW = T
        self.aW4 = aW
        e(f's_lshl_b32 s3, s65, 12\nv_add_u32 {v(aW)}, s3, {v(self.vWstd)}')
        for t in range(1, 4): e(f'v_xor_b32 {v(aW+t)}, {32*t}, {v(aW)}')
        e('s_waitcnt vmcnt(0) lgkmcnt(0)\ns_barrier')
        e.auto = False
        for sg in range(12):
            if sg == 8:
                for t in range(4): e(f'v_add_u32 {v(aW+t)}, 65536, {v(aW+t)}')
            for t in range(4):
                for hh in range(2): e(f'ds_read_b64_tr_b16 {a(16*sg+4*t+2*hh,2)}, {v(aW+t)} offset:{(sg%8)*8192+hh*512}')
        e('s_waitcnt lgkmcnt(0)\ns_barrier')
        e.auto = True
        self.stamp()
        aH, aU, ACC, FU = T + 5, T + 6, T + 8, T + 72
        FH = 192
        e(f'''v_lshl_add_u32 v1, {v(vG)}, 3, {v(vR)}
        v_add_u32 v1, v1, {v(vCQ)}
        v_lshlrev_b32 v1, 3, v1
        s_mul_i32 s3, s64, 4128
        s_add_u32 s3, s3, {HB + 8}
        v_add_u32 {v(aH)}, s3, v1
        v_lshlrev_b32 v1, 5, {v(vCQ)}
        v_lshlrev_b32 v2, 6, {v(vG)}
        v_sub_u32 v1, v1, v2
        v_lshlrev_b32 v2, 3, {v(vR)}
        v_sub_u32 v1, v1, v2
        s_mul_i32 s3, s64, 4352
        s_lshl_b32 s63, s65, 7
        s_add_u32 s3, s3, s63
        s_add_u32 s3, s3, {UB + 256 + 24 - 32}
        v_add_u32 {v(aU)}, s3, v1''')
        def rdf(q):
            for hh in range(2): e(f'ds_read_b64_tr_b16 {a(FH+4*q+2*hh,2)}, {v(aH)} offset:{256*q+32*hh}')
            for hh in range(2): e(f'ds_read_b64_tr_b16 {v(FU+4*q+2*hh,2)}, {v(aU)} offset:{256*q+32-32*hh}')
        def horner(J):
            d = ACC + 4 * J
            return [f'v_add_f32_dpp {v(d+k)}, {v(d+k+1)}, {v(d+k)} wave_shr:1 row_mask:0xf bank_mask:0xf bound_ctrl:0' for k in (2, 1, 0)]
        rdf(0); rdf(1)
        pend = []
        n = 0
        for J in range(16):
            if J + 2 < 16: rdf(J + 2)
            for q in range(J + 1):
                c = v(ACC + 4 * J, 4) if q else '0'
                e(f'{MF} {v(ACC+4*J,4)}, {v(FU+4*(J-q),4)}, {a(FH+4*q,4)}, {c}')
                n += 1
                if n % 10 == 0 and self.w4n < 28: self.w4_dma(1)
                if q >= 3 and pend: e(pend.pop(0))
            if J >= 1: pend += horner(J - 1) if J >= 4 else []
        self.w4_dma(28 - self.w4n)
        rest = [horner(J) for J in (0, 1, 2, 15)]
        for p in pend: e(p)
        for k in range(3):
            for h in rest: e(h[k])
        e(f'''v_lshlrev_b32 v1, 2, {v(vLN)}
        s_mul_i32 s3, s64, {YB1 - YB0}
        s_lshl_b32 s63, s65, 8
        s_add_u32 s3, s3, s63
        s_add_u32 s3, s3, {YB0}
        v_add_u32 v1, s3, v1
        s_mul_i32 s3, s64, 528
        s_lshl_b32 s63, s65, 4
        s_add_u32 s3, s3, s63
        s_add_u32 s3, s3, {CARR + 16}
        v_mov_b32 v2, s3
        s_barrier''')
        for J in range(16): e(f'ds_write_b32 v1, {v(ACC+4*J)} offset:{512*J}')
        e('s_mov_b32 exec_lo, 0\ns_mov_b32 exec_hi, 0x80000000')
        for J in range(16): e(f'ds_write_b128 v2, {v(ACC+4*J,4)} offset:{32*J}')
        e(f'''s_mov_b64 exec, -1
        v_lshlrev_b32 {v(DV)}, 16, {v(DV)}
        v_lshlrev_b32 v1, 5, {v(vLN)}
        s_mul_i32 s3, s64, {YB1 - YB0}
        s_lshl_b32 s63, s65, 12
        s_add_u32 s3, s3, s63
        s_add_u32 s3, s3, {YB0}
        v_add_u32 v1, s3, v1
        v_lshlrev_b32 v3, 4, {v(vLN)}
        s_mul_i32 s3, s64, 4352
        s_lshl_b32 s63, s65, 11
        s_add_u32 s3, s3, s63
        s_add_u32 s3, s3, {UB + 256}
        v_add_u32 v2, s3, v3
        v_lshrrev_b32 v4, 3, {v(vLN)}
        v_lshlrev_b32 v4, 4, v4
        s_lshl_b32 s63, s65, 8
        v_add_u32 v4, s63, v4
        v_add_u32 v5, 128, v4
        v_and_b32 v6, 7, v0
        v_cmp_eq_u32 vcc, 0, v6
        v_cndmask_b32 v4, 0, v4, vcc
        v_cndmask_b32 v5, 0, v5, vcc
        s_mul_i32 s3, s64, 528
        s_add_u32 s3, s3, {CARR}
        v_add_u32 v4, s3, v4
        v_add_u32 v5, s3, v5
        s_lshl_b32 s63, s2, 13
        s_lshl_b32 s3, s{sW}, 11
        s_add_u32 s63, s63, s3
        s_add_u32 s63, s63, {WS_YT}
        s_waitcnt lgkmcnt(0)
        s_barrier''')
        Y, U, CR, UF = ACC, ACC + 16, ACC + 24, ACC + 32
        for i in range(2):
            e(f'ds_read_b128 {v(Y+8*i,4)}, v1 offset:{2048*i}\nds_read_b128 {v(Y+8*i+4,4)}, v1 offset:{2048*i+16}')
            e(f'ds_read_b128 {v(U+4*i,4)}, v2 offset:{1024*i}\nds_read_b128 {v(CR+4*i,4)}, {v(4+i)}')
        for i in range(2):
            for k in range(3): e(f'v_add_f32 {v(Y+8*i+k)}, {v(Y+8*i+k)}, {v(CR+4*i+1+k)}')
            for k in range(4): e(f'v_lshlrev_b32 {v(UF+2*k)}, 16, {v(U+4*i+k)}\nv_and_b32 {v(UF+2*k+1)}, 0xffff0000, {v(U+4*i+k)}')
            for k in range(8): e(f'v_fmac_f32 {v(Y+8*i+k)}, {v(UF+k)}, {v(DV)}')
            for k in range(4): e(f'v_cvt_pk_bf16_f32 {v(U+4*i+k)}, {v(Y+8*i+2*k)}, {v(Y+8*i+2*k+1)}')
            e(f'buffer_store_dwordx4 {v(U+4*i,4)}, v3, {srd(SWS)}, s63 offen offset:{1024*i} sc1', tag='st')
        self.signal(73, 'st')
        e('s_waitcnt vmcnt(0)')
        self.stamp()

    def phase4(self):
        e = self.e
        aW = self.aW4
        dK, dS, ACC, FX, FW, X1F = T + 4, T + 5, T + 8, T + 40, T + 72, T + 104
        e(f'''s_lshr_b32 s64, s{sW}, 1
        s_and_b32 s65, s{sW}, 1
        s_lshl_b32 s63, s{sTT}, 6
        s_lshl_b32 s3, s{sW}, 4
        s_add_u32 s63, s63, s3
        v_add_u32 v1, s63, {v(vJ)}
        v_lshlrev_b32 v2, 15, {v(vG)}
        v_lshl_add_u32 {v(dK)}, v1, 4, v2
        v_xor_b32 {v(dS)}, 256, {v(dK)}
        s_mul_i32 s63, s65, {28*131072}
        s_add_u32 s63, s63, {WS_H2}
        s_lshr_b32 s66, s{sTT}, 1
        s_lshl_b32 s66, s66, 7
        s_add_u32 s66, s66, {C3*128}''')
        for p in range(8): e(f'v_lshlrev_b32 {v(X1F+2*p)}, 16, {v(X1P+p)}\nv_and_b32 {v(X1F+2*p+1)}, 0xffff0000, {v(X1P+p)}')
        L = self.lab('p4w')
        e(f's_cmp_lg_u32 s{sW}, 0\ns_cbranch_scc1 {L}')
        self.poll(v(vZ), 1, 16, 's66')
        e.label(L)
        e('s_barrier')
        self.stamp()
        cnt = [0]
        def ldx(u):
            e(f'buffer_load_dwordx4 {v(FX+8*u,4)}, {v(dK)}, {srd(SWS)}, s63 offen sc1\nbuffer_load_dwordx4 {v(FX+8*u+4,4)}, {v(dS)}, {srd(SWS)}, s63 offen sc1')
            e('s_add_u32 s63, s63, 131072')
        def ldw(sg):
            slot = sg if sg < 16 else sg - 16
            if sg == 16:
                for t in range(4): e(f'v_subrev_u32 {v(aW+t)}, 65536, {v(aW+t)}')
            if sg == 24:
                for t in range(4): e(f'v_add_u32 {v(aW+t)}, 65536, {v(aW+t)}')
            return [f'ds_read_b64_tr_b16 {v(FW+16*(sg%2)+4*t+2*hh,2)}, {v(aW+t)} offset:{(slot%8)*8192+hh*512}' for t in range(4) for hh in range(2)]
        for u in range(4): ldx(u)
        for sg in range(28):
            u = sg % 4
            rds = ldw(sg + 1) if 11 <= sg < 27 else []
            for t in range(4):
                for sl in range(2):
                    w = a(16 * sg + 4 * t, 4) if sg < 12 else v(FW + 16 * (sg % 2) + 4 * t, 4)
                    c = v(ACC + 16 * sl + 4 * t, 4) if sg else '0'
                    e(f'{MF} {v(ACC+16*sl+4*t,4)}, {w}, {v(FX+8*u+4*sl,4)}, {c}')
                    if rds: e(rds.pop(0))
            if sg + 4 < 28: ldx(u)
            if sg == 12:
                e(f'''v_lshrrev_b32 v1, 3, {v(vLN)}
                v_and_b32 v2, 7, v0
                v_and_b32 v3, 6, v1
                v_xor_b32 v2, v2, v3
                v_lshlrev_b32 v1, 12, v1
                v_lshl_add_u32 v7, v2, 4, v1
                s_lshl_b32 s66, s{sNT}, 7
                s_add_u32 s66, s66, {CY*128}
                s_lshl_b32 s67, s{sNT}, 18
                s_lshl_b32 s3, s{sW}, 16
                s_add_u32 s67, s67, s3
                s_lshl_b32 s3, s{sTT}, 7
                s_add_u32 s67, s67, s3
                s_add_u32 s67, s67, {WS_YT}
                s_lshl_b32 s68, s{sW}, 11''')
                self.check_issue('s66')
            if sg == 18:
                self.check_verify(32, 's66')
                e(f's_add_u32 m0, s68, {YIN}\nbuffer_load_dwordx4 v7, {srd(SWS)}, s67 offen sc1 lds\ns_add_u32 s67, s67, 32768')
                e(f's_add_u32 m0, s68, {YIN + 1024}\nbuffer_load_dwordx4 v7, {srd(SWS)}, s67 offen sc1 lds')
        self.stamp()
        e(f'''v_lshlrev_b32 v1, 4, {v(vLN)}
        s_lshl_b32 s3, s{sW}, 12
        s_add_u32 s3, s3, {EXC}
        v_add_u32 v1, s3, v1
        v_xor_b32 v2, 4096, v1''')
        for t in range(4): e(f'ds_write_b128 v1, {v(ACC+16+4*t,4)} offset:{1024*t}')
        e(f'''v_lshl_add_u32 v3, {v(vG)}, 2, {v(vR)}
        v_and_b32 v4, 6, v3
        v_lshrrev_b32 v5, 1, {v(vCQ)}
        s_lshl_b32 s3, s{sW}, 1
        v_add_u32 v5, s3, v5
        v_xor_b32 v4, v4, v5
        v_lshlrev_b32 v4, 4, v4
        v_and_b32 v5, 1, {v(vCQ)}
        v_lshl_or_b32 v4, v5, 3, v4
        v_lshl_add_u32 v3, v3, 7, v4
        v_add_u32 v3, {YIN}, v3
        s_waitcnt vmcnt(0) lgkmcnt(0)
        s_barrier''')
        YR, YF, O, E = FW, FX, ACC, FX + 16
        for t in range(4): e(f'ds_read_b128 {v(ACC+16+4*t,4)}, v2 offset:{1024*t}')
        for t in range(4): e(f'ds_read_b64_tr_b16 {v(YR+2*t,2)}, v3 offset:{2048*t}')
        e(f'v_mov_b32 v4, {fbits(-1.4426950408889634)}\nv_mov_b32 v5, v4\nv_mov_b32 v6, 1.0\nv_mov_b32 v7, 1.0')
        for p in range(8): e(f'v_pk_add_f32 {v(O+2*p,2)}, {v(O+2*p,2)}, {v(X1F+2*p,2)}')
        for p in range(8): e(f'v_pk_add_f32 {v(O+2*p,2)}, {v(O+2*p,2)}, {v(ACC+16+2*p,2)}')
        for p in range(8): e(f'v_pk_mul_f32 {v(E+2*p,2)}, {v(O+2*p,2)}, v[4:5]')
        for i in range(16): e(f'v_exp_f32 {v(E+i)}, {v(E+i)}')
        for p in range(8): e(f'v_lshlrev_b32 {v(YF+2*p)}, 16, {v(YR+p)}\nv_and_b32 {v(YF+2*p+1)}, 0xffff0000, {v(YR+p)}')
        for p in range(8): e(f'v_pk_add_f32 {v(E+2*p,2)}, {v(E+2*p,2)}, v[6:7]')
        for i in range(16): e(f'v_rcp_f32 {v(E+i)}, {v(E+i)}')
        for p in range(8): e(f'v_pk_mul_f32 {v(YF+2*p,2)}, {v(YF+2*p,2)}, {v(XN+2*p,2)}')
        for p in range(8): e(f'v_pk_mul_f32 {v(O+2*p,2)}, {v(O+2*p,2)}, {v(E+2*p,2)}')
        for p in range(8): e(f'v_pk_fma_f32 {v(O+2*p,2)}, {v(O+2*p,2)}, {v(YF+2*p,2)}, {v(XF+2*p,2)}')
        for p in range(8): e(f'v_cvt_pk_bf16_f32 {v(YR+p)}, {v(O+2*p)}, {v(O+2*p+1)}')
        e(f'''v_lshrrev_b32 v1, 1, {v(vG)}
        v_and_b32 v2, 7, {v(vJ)}
        v_xor_b32 v1, v1, v2
        v_lshlrev_b32 v1, 4, v1
        v_and_b32 v2, 1, {v(vG)}
        v_lshl_or_b32 v1, v2, 3, v1
        v_lshl_add_u32 v1, {v(vJ)}, 7, v1
        s_lshl_b32 s3, s{sW}, 11
        s_add_u32 s3, s3, {OST}
        v_add_u32 v1, s3, v1
        v_lshrrev_b32 v3, 3, {v(vLN)}
        v_and_b32 v4, 7, v0
        v_xor_b32 v5, v3, v4
        v_lshlrev_b32 v5, 4, v5
        v_lshl_add_u32 v5, v3, 7, v5
        v_add_u32 v5, s3, v5
        v_lshlrev_b32 v3, 10, v3
        v_lshl_add_u32 v3, v4, 4, v3
        s_lshl_b32 s63, s{sTT}, 16
        s_lshl_b32 s3, s{sW}, 14
        s_add_u32 s63, s63, s3
        s_lshl_b32 s3, s{sNT}, 7
        s_add_u32 s63, s63, s3
        s_add_u32 s64, s63, 8192''')
        for t in range(4): e(f'v_xor_b32 v2, {32*t}, v1\nds_write_b64 v2, {v(YR+2*t,2)}')
        e('s_waitcnt lgkmcnt(0)')
        e(f'ds_read_b128 {v(E,4)}, v5\nds_read_b128 {v(E+4,4)}, v5 offset:1024')
        e(f'buffer_store_dwordx4 {v(E,4)}, v3, {srd(SO)}, s63 offen\nbuffer_store_dwordx4 {v(E+4,4)}, v3, {srd(SO)}, s64 offen')
        self.stamp()

    def finish(self):
        e = self.e
        if self.prof:
            e(f's_waitcnt vmcnt(0)')
            self.stamp()
            e(f's_lshl_b32 s3, s2, 2\ns_add_u32 s3, s3, s{sW}\ns_lshl_b32 s3, s3, 7\ns_add_u32 s3, s3, {WS_PROF}\ns_mov_b64 exec, 1')
            for i in range(self.nst): e(f'v_mov_b32 v1, s{80+i}\nbuffer_store_dword v1, {v(vZ)}, {srd(SWS)}, s3 offen offset:{4*i}')
        e.label('L_end')
        e('s_endpgm')

    def build(self):
        steps = [self.setup, self.phase1, self.window1, self.phase2, self.window2, self.phase3, self.window3, self.phase4]
        for i, f in enumerate(steps):
            if i > self.stop: break
            self.e.c(f'==== {f.__name__}')
            f()
        self.finish()
        lines, nn = insert_nops(self.e.lines)
        for wg in (0, 1, 77, 255):
            bars = set()
            for w in range(4):
                errs, nb, cnt = trace_check(lines, wg, w)
                bars.add(nb)
                for x in errs[:10]: print(f'TRACE wg{wg} w{w}:', x, file=sys.stderr)
            assert len(bars) == 1, ('barrier counts differ', wg, bars)
        return lines, nn, cnt

HEADER = open('recurrent_scan__ssm_conv_h3__mixer_s_mlp__prompt.s.ref').read().split('; Override launch')[0] if __name__ == '__main__' else ''
def full(lines, header=''):
    return header + f"""; @launch grid=(256,1,1) block=(256,1,1) lds={LDS_BYTES}
.amdgcn_target "amdgcn-amd-amdhsa--gfx950"
.text
.globl {KN}
.p2align 8
.type {KN},@function
{KN}:
""" + '\n'.join(lines) + f"""
.section .rodata,"a"
.p2align 6
.amdhsa_kernel {KN}
  .amdhsa_next_free_vgpr 512
  .amdhsa_next_free_sgpr 102
  .amdhsa_accum_offset 256
  .amdhsa_group_segment_fixed_size 0
  .amdhsa_kernarg_size 112
  .amdhsa_user_sgpr_count 2
  .amdhsa_user_sgpr_kernarg_segment_ptr 1
  .amdhsa_system_sgpr_workgroup_id_x 1
.end_amdhsa_kernel
"""
if __name__ == '__main__':
    import argparse
    ap = argparse.ArgumentParser()
    ap.add_argument('-o', default='k.s'); ap.add_argument('--prof', action='store_true'); ap.add_argument('--stop', type=int, default=99)
    ap.add_argument('--rot', type=int, default=0)
    A = ap.parse_args()
    g = G(prof=A.prof, stop=A.stop, rot=A.rot)
    lines, nn, cnt = g.build()
    open(A.o, 'w').write(full(lines, HEADER))
    print('lines', len(lines), 'nops inserted', nn, cnt)
```

```python
import re

REG_RE = re.compile(r'^(-|abs\()?([vas])(?:(\d+)|\[(\d+):(\d+)\])\)?$')
TRANS = ('v_exp_f32', 'v_log_f32', 'v_rcp_f32', 'v_rsq_f32', 'v_sqrt_f32', 'v_sin_f32', 'v_cos_f32', 'v_rcp_iflag_f32')

def regs_of(op):
    op = op.strip()
    if op == 'vcc': return {('s', 'vcc')}
    if op in ('vcc_lo', 'vcc_hi'): return {('s', 'vcc')}
    if op == 'exec' or op in ('exec_lo', 'exec_hi'): return {('s', 'exec')}
    if op == 'm0': return {('s', 'm0')}
    m = REG_RE.match(op)
    if not m: return set()
    k = m.group(2)
    if m.group(3) is not None: return {(k, int(m.group(3)))}
    return {(k, i) for i in range(int(m.group(4)), int(m.group(5)) + 1)}

def split_ops(s):
    out, depth, cur = [], 0, ''
    for ch in s:
        if ch in '[(': depth += 1
        if ch in '])': depth -= 1
        if ch == ',' and depth == 0:
            out.append(cur.strip()); cur = ''
        else: cur += ch
    if cur.strip(): out.append(cur.strip())
    return out

class Ins:
    __slots__ = ('text', 'op', 'ops', 'mods', 'cls', 'w', 'r', 'label', 'note', 'srcC', 'srcAB', 'passes', 'target', 'sdata')
    def __init__(self, text):
        self.text = text
        code, _, note = text.partition(';')
        self.note = note.strip(); code = code.strip()
        self.label = None; self.target = None; self.w = set(); self.r = set(); self.srcC = set(); self.srcAB = set()
        self.passes = 0; self.ops = []; self.mods = ''; self.sdata = set()
        if code.endswith(':'):
            self.label = code[:-1]; self.op = ''; self.cls = 'label'; return
        if not code or code.startswith('.'):
            self.op = ''; self.cls = 'dir'; return
        parts = code.split(None, 1)
        self.op = op = parts[0]
        rest = parts[1] if len(parts) > 1 else ''
        ops = split_ops(rest)
        if ops:
            last = ops[-1].split(None, 1)
            if len(last) > 1 and not op.startswith('s_waitcnt'):
                ops[-1] = last[0]; self.mods = last[1]
        self.ops = ops
        R = lambda xs: set().union(*[regs_of(x) for x in xs]) if xs else set()
        if op.startswith('v_mfma'):
            self.cls = 'mfma'; self.w = R(ops[:1]); self.srcAB = R(ops[1:3]); self.srcC = R(ops[3:4]); self.r = self.srcAB | self.srcC
            self.passes = 8 if '32x32' in op else 4
        elif op.startswith('v_'):
            self.cls = 'valu'
            nd = 2 if re.match(r'v_(add|sub|subrev|addc|subb|subbrev)_co_|v_div_scale|v_mad_u64', op) else 1
            if op.startswith('v_permlane') and 'swap' in op:
                self.w = R(ops[:2]); self.r = R(ops[:2])
            elif op == 'v_nop': pass
            else:
                self.w = R(ops[:nd]); self.r = R(ops[nd:])
                if re.match(r'v_(fmac|dot2c|pk_fmac|mac|writelane)', op) or '_dpp' in op or '_sdwa' in op or 'row_' in self.mods or 'wave_' in self.mods or 'quad_perm' in self.mods:
                    self.r |= R(ops[:1])
                if op.startswith('v_cndmask') and len(ops) == 3: self.r |= {('s', 'vcc')}
            self.r |= {('s', 'exec')}
        elif op.startswith('ds_'):
            self.cls = 'ds'
            if re.match(r'ds_(read|bpermute|permute|swizzle)', op):
                self.w = R(ops[:1]); self.r = R(ops[1:])
                if 'd16' in op: self.r |= self.w
            else: self.r = R(ops)
        elif re.match(r'(buffer|global)_', op):
            self.cls = 'vmem'
            allm = self.mods.split()
            if op in ('buffer_inv', 'buffer_wbl2'): pass
            elif 'lds' in allm or '_lds_' in op:
                self.r = R(ops) | {('s', 'm0')}
            elif '_load' in op:
                self.w = R(ops[:1]); self.r = R(ops[1:])
                if 'd16' in op: self.r |= self.w
            elif '_store' in op:
                self.r = R(ops)
                if re.search(r'x[34]$', op): self.sdata = R(ops[:1]) if op.startswith('buffer') else R(ops[1:2])
            elif '_atomic' in op:
                self.r = R(ops)
                if 'sc0' in allm: self.w = R(ops[:1])
        elif re.match(r's_(load|memtime|memrealtime|atomic|buffer_load)', op):
            self.cls = 'smem'; self.w = R(ops[:1]); self.r = R(ops[1:])
        elif op.startswith('s_cbranch') or op == 's_branch':
            self.cls = 'branch'; self.target = ops[0]
        elif op in ('s_waitcnt', 's_barrier', 's_nop', 's_endpgm', 's_sleep', 's_setprio'):
            self.cls = op
        elif op.startswith('s_'):
            self.cls = 'salu'
            if op.startswith('s_cmp') or op.startswith('s_bitcmp'): self.r = R(ops)
            else:
                self.w = R(ops[:1]); self.r = R(ops[1:])
                if 'saveexec' in op: self.w |= {('s', 'exec')}; self.r |= {('s', 'exec')}
                if op in ('s_addk_i32', 's_mulk_i32'): self.r |= self.w
        else:
            raise ValueError('unparsed: ' + text)
    def states(self):
        if self.cls in ('label', 'dir'): return 0
        if self.cls == 's_nop': return int(self.ops[0], 0) + 1
        return 1

def vec(s): return {x for x in s if x[0] in 'va'}
def sca(s): return {x for x in s if x[0] == 's'}

def need(p, c):
    n = 0
    dpp = '_dpp' in c.op or 'row_' in c.mods or 'wave_' in c.mods or 'quad_perm' in c.mods
    if p.cls == 'valu':
        pw_v, pw_s = vec(p.w), sca(p.w)
        if c.cls == 'mfma' and pw_v & c.r: n = max(n, 2)
        if c.cls == 'mfma' and ('s', 'exec') in pw_s: n = max(n, 4)
        if c.cls == 'vmem' and pw_s & c.r: n = max(n, 5)
        if c.cls == 'valu':
            if (pw_s - {('s', 'exec')}) & c.r: n = max(n, 4 if re.match(r'v_(readlane|writelane)', c.op) else 2)
            if dpp and pw_v & c.r: n = max(n, 2)
            if c.op.startswith('v_permlane') and pw_v & c.r: n = max(n, 2)
            if re.match(r'v_read(first)?lane', c.op) and pw_v & c.r: n = max(n, 1)
            if p.op.split('_e')[0] in TRANS and pw_v & c.r and c.op.split('_e')[0] not in TRANS: n = max(n, 1)
            if ('_sdwa' in p.op or 'op_sel:' in p.mods and not p.op.startswith('v_pk')) and pw_v & (c.r | c.w): n = max(n, 1)
        if p.op.startswith('v_dot') and pw_v & (c.r | c.w) and c.cls in ('valu', 'mfma', 'vmem', 'ds'):
            if c.op != p.op or pw_v & set().union(*[regs_of(o) for o in c.ops[1:3]]): n = max(n, 3)
        if c.cls == 'branch' and 'vcc' in c.op and ('s', 'vcc') in pw_s: n = max(n, 0)
    if p.cls == 'mfma':
        big = p.passes == 8
        if c.cls == 'mfma':
            if p.w & c.srcAB: n = max(n, 12 if big else 8)
            if p.w & c.srcC and not (p.w == c.srcC and p.passes == c.passes): n = max(n, 10 if big else 6)
            if p.w & c.w and not (p.w & c.srcC): n = max(n, 12 if big else 8)
        elif c.cls in ('valu', 'vmem', 'ds'):
            if p.w & (c.r | c.w): n = max(n, 12 if big else 8)
            if c.cls == 'valu' and p.srcC & c.w: n = max(n, 7 if big else 3)
    if p.cls == 'salu' and ('s', 'm0') in p.w and c.cls == 'vmem' and ('s', 'm0') in c.r: n = max(n, 1)
    if p.cls == 'vmem' and p.sdata and c.cls in ('valu', 'mfma') and p.sdata & c.w: n = max(n, 2)
    if p.cls == 'vmem' and p.sdata and c.cls in ('vmem', 'ds') and p.sdata & c.w: n = max(n, 1)
    return n

def insert_nops(lines):
    ins = [Ins(l) for l in lines]
    changed = True; total = 0
    while changed:
        changed = False
        lab = {x.label: i for i, x in enumerate(ins) if x.label}
        jump = {}
        for i, x in enumerate(ins):
            if x.cls == 'branch': jump.setdefault(lab[x.target], []).append(i)
        out = []
        for i, c in enumerate(ins):
            if c.cls in ('valu', 'mfma', 'vmem', 'ds'):
                worst = 0
                stack = [(i - 1, 0)]; seen = set()
                while stack:
                    j, d = stack.pop()
                    while j >= 0 and d < 14:
                        if (j, d) in seen: break
                        seen.add((j, d))
                        p = ins[j]
                        if p.label:
                            for b in jump.get(j, []): stack.append((b, d))
                            if j > 0 and (ins[j - 1].op in ('s_branch', 's_endpgm')): break
                        elif p.cls not in ('dir',):
                            k = need(p, c)
                            if k > d: worst = max(worst, k - d)
                            d += p.states()
                        j -= 1
                if worst:
                    out.append(Ins(f's_nop {worst - 1}')); changed = True; total += 1
            out.append(c)
        ins = out
        if changed:
            continue
    return [x.text for x in ins], total

class Emit:
    def __init__(self):
        self.lines = []; self.vm = []; self.lg = []; self.auto = True
    def raw(self, t): self.lines.append(t)
    def label(self, n): self.lines.append(n + ':')
    def c(self, t): self.lines.append('; ' + t)
    def _cover(self, q, regs):
        idx = -1
        for i, (w, tag) in enumerate(q):
            if w & regs: idx = i
        return idx
    def __call__(self, text, tag=None):
        for t in text.strip().split('\n'):
            t = t.strip()
            if not t: continue
            x = Ins(t)
            if x.cls == 's_waitcnt':
                m = re.search(r'vmcnt\((\d+)\)', t)
                if m:
                    n = int(m.group(1)); self.vm = self.vm[len(self.vm) - n:] if n < len(self.vm) else self.vm
                    if n == 0: self.vm = []
                m = re.search(r'lgkmcnt\((\d+)\)', t)
                if m:
                    n = int(m.group(1)); self.lg = self.lg[len(self.lg) - n:] if n < len(self.lg) else self.lg
                    if n == 0: self.lg = []
            elif self.auto and x.cls not in ('label', 'dir'):
                touch = x.r | x.w
                i = self._cover(self.vm, touch)
                w = []
                if i >= 0:
                    n = len(self.vm) - 1 - i; assert n < 64; w.append(f'vmcnt({n})'); self.vm = self.vm[i + 1:]
                i = self._cover(self.lg, touch)
                if i >= 0:
                    n = len(self.lg) - 1 - i
                    if any(tg == 'smem' for _, tg in self.lg): n = 0
                    n = min(n, 15); w.append(f'lgkmcnt({n})'); self.lg = self.lg[len(self.lg) - n:] if n else []
                if w: self.lines.append('s_waitcnt ' + ' '.join(w))
            if x.cls == 'vmem' and x.op not in ('buffer_inv', 'buffer_wbl2'): self.vm.append((x.w, tag))
            if x.cls == 'ds': self.lg.append((x.w, 'ds'))
            if x.cls == 'smem': self.lg.append((x.w, 'smem'))
            self.lines.append(t)
    def wait_tag(self, tag):
        idx = max([i for i, (w, tg) in enumerate(self.vm) if tg == tag], default=-1)
        if idx >= 0:
            n = len(self.vm) - 1 - idx; assert n < 64
            self.lines.append(f's_waitcnt vmcnt({n})'); self.vm = self.vm[idx + 1:]
    def text(self): return '\n'.join(self.lines) + '\n'

M32 = 0xFFFFFFFF
def trace_check(lines, wg, wave, maxsteps=200000, verbose=False):
    ins = [Ins(l) for l in lines]
    lab = {x.label: i for i, x in enumerate(ins) if x.label}
    S = {2: wg}; scc = None; pc = 0; vm = []; lg = []; errs = []; n = 0; barriers = 0; counts = {}
    segs = []; seg = {}; tnow = 0; pipe = 0; tseg = 0
    def val(o):
        o = o.strip()
        if o == 'm0': return S.get('m0')
        m = re.match(r'^s(\d+)$', o)
        if m: return S.get(int(m.group(1)))
        try: return int(o, 0) & M32
        except ValueError: return None
    def setv(o, v):
        if o == 'm0': S['m0'] = v; return
        m = re.match(r'^s(\d+)$', o)
        if m: S[int(m.group(1))] = v
        else:
            for k, r in regs_of(o): S.pop(r, None)
    while pc < len(ins):
        x = ins[pc]; n += 1
        if n > maxsteps: errs.append('trace did not end'); break
        counts[x.cls] = counts.get(x.cls, 0) + 1
        if x.cls == 'dir' and x.note.startswith('@'):
            segs.append((x.note, tnow - tseg, seg)); seg = {}; tseg = tnow
        if x.cls not in ('label', 'dir'):
            seg[x.cls] = seg.get(x.cls, 0) + 1
            if x.cls == 'mfma':
                tnow = max(tnow, pipe); pipe = tnow + 4 * x.passes; tnow += 8
            elif x.cls == 's_nop': tnow += 4 * x.states()
            elif x.op.split('_e')[0] in TRANS: tnow += 8
            else: tnow += 4
        if x.cls == 's_endpgm':
            segs.append(('@end', tnow - tseg, seg))
            if verbose:
                for nm, t, sg in segs: print('%-14s issue-bound %6d  %s' % (nm, t, sg))
            break
        if x.cls == 's_barrier': barriers += 1
        if x.cls == 's_waitcnt':
            m = re.search(r'vmcnt\((\d+)\)', x.text)
            if m: k = int(m.group(1)); vm = vm[len(vm) - k:] if k < len(vm) else vm; vm = vm if k else []
            m = re.search(r'lgkmcnt\((\d+)\)', x.text)
            if m:
                k = int(m.group(1))
                if k and any(t == 'smem' for _, t, _ in lg): pass
                else: lg = (lg[len(lg) - k:] if k < len(lg) else lg) if k else []
        elif x.cls not in ('label', 'dir'):
            touch = x.r | x.w
            for w, t, src in vm + lg:
                if w & touch: errs.append(f'line {pc}: "{x.text}" touches {sorted(w & touch)[:3]} still loading from "{src}"')
            if x.cls == 'vmem' and x.op not in ('buffer_inv', 'buffer_wbl2'):
                vm.append((x.w, 'vm', x.text))
                if len(vm) > 63: errs.append(f'line {pc}: more than 63 vmem ops in flight')
            if x.cls == 'ds': lg.append((x.w, 'ds', x.text))
            if x.cls == 'smem':
                lg.append((x.w, 'smem', x.text))
                for k, r in x.w: S.pop(r, None)
        if x.cls == 'valu':
            if x.op.startswith('v_readfirstlane') and 'wave' in x.note: setv(x.ops[0], wave)
            else:
                for k, r in sca(x.w): S.pop(r, None)
        if x.cls == 'salu':
            o = x.ops; op = x.op
            a = val(o[1]) if len(o) > 1 else None; b = val(o[2]) if len(o) > 2 else None
            if op.startswith('s_cmp'):
                a, b = val(o[0]), val(o[1])
                if a is None or b is None: scc = None
                else:
                    k = op.split('_')[2]
                    if op.endswith('i32'):
                        a = a - (1 << 32) if a >> 31 else a; b = b - (1 << 32) if b >> 31 else b
                    scc = int({'eq': a == b, 'lg': a != b, 'lt': a < b, 'le': a <= b, 'gt': a > b, 'ge': a >= b}[k])
            elif op in ('s_mov_b32', 's_movk_i32'): setv(o[0], a)
            elif op == 's_cselect_b32': setv(o[0], None if scc is None else (a if scc else b))
            elif op.endswith('b64') or 'saveexec' in op:
                for k, r in x.w: S.pop(r, None)
                if op not in ('s_mov_b64', 's_getpc_b64'): scc = None
            elif a is None or (len(o) > 2 and b is None):
                setv(o[0], None); scc = None if op not in ('s_mul_i32',) else scc
            else:
                f = {'s_add_u32': lambda: a + b, 's_add_i32': lambda: a + b, 's_sub_u32': lambda: a - b, 's_sub_i32': lambda: a - b, 's_mul_i32': lambda: a * b,
                     's_lshl_b32': lambda: a << (b & 31), 's_lshr_b32': lambda: a >> (b & 31), 's_and_b32': lambda: a & b, 's_or_b32': lambda: a | b,
                     's_xor_b32': lambda: a ^ b, 's_min_u32': lambda: min(a, b), 's_max_u32': lambda: max(a, b), 's_mul_hi_u32': lambda: (a * b) >> 32,
                     's_bfe_u32': lambda: (a >> (b & 31)) & ((1 << ((b >> 16) & 127)) - 1)}.get(op)
                if f is None: setv(o[0], None); scc = None
                else:
                    r = f(); setv(o[0], r & M32)
                    if op in ('s_add_u32',): scc = int(r > M32)
                    elif op in ('s_sub_u32',): scc = int(r < 0)
                    elif op not in ('s_mul_i32', 's_mul_hi_u32'): scc = int((r & M32) != 0)
        if x.cls == 'branch':
            if 'taken' in x.note: t = 'nottaken' not in x.note
            elif x.op == 's_branch': t = True
            elif x.op == 's_cbranch_scc1' and scc is not None: t = scc == 1
            elif x.op == 's_cbranch_scc0' and scc is not None: t = scc == 0
            else:
                errs.append(f'line {pc}: unknown branch "{x.text}"'); break
            if t: pc = lab[x.target]; continue
        pc += 1
    return errs, barriers, counts
```

```python
import sys
from asmkit import Emit, insert_nops, trace_check

KN = 'recurrent_scan__ssm_conv_h3__mixer_s_mlp__prompt_kernel'
MB = 1 << 20
C1, C2, C3, CA, CY = 0, 32, 64, 96, 104
NCNT = 112
WS_H, WS_X1, WS_H2, WS_KVT, WS_YT, WS_ST, WS_PROF = 1 * MB, 3 * MB, 5 * MB, 13 * MB, 15 * MB, 17 * MB, 18 * MB
WS_SIZE = 20 * MB
R0, R1, R2 = 0, 65536, 131072
LDS_BYTES = 163840
KIN, VIN, STX, CSX = R2, R2 + 9216, R2 + 17408, R2 + 18432
HB, UB, YB0, YB1, CARR = R2, R2 + 8448, R2, R2 + 17152, R2 + 25344
YIN, EXC, OST = R2, R2 + 8192, R2 + 24576
SX, SK, SV, SW1, SW2, SW3, SW4, SSK, SO, SWS, SDB, SSH, SSD = 8, 12, 16, 20, 24, 28, 32, 36, 40, 44, 48, 52, 56
sW, sTT, sNT, sT3, sN3, sC = 4, 5, 6, 60, 61, 62
SPIN = 400000
GA = -2.0 * 0.7978845608028654 * 1.4426950408889634
GB = GA * 0.044715
import struct
def fbits(x): return '0x%08x' % struct.unpack('<I', struct.pack('<f', x))[0]
def srd(r): return f's[{r}:{r+3}]'
def v(n, c=1): return f'v{n}' if c == 1 else f'v[{n}:{n+c-1}]'
def a(n, c=1): return f'a{n}' if c == 1 else f'a[{n}:{n+c-1}]'
MF = 'v_mfma_f32_16x16x32_bf16'

XF, XN, X1P = 16, 32, 48
vJ, vG, vLN, vR, vCQ = 56, 57, 58, 59, 60
vONE, vZ = 61, 62
vWD = 63
T = 64
vP, vCK = 255, 254

class G:
    def __init__(self, prof=False, stop=99, rot=0, dbgtime=0):
        self.dbgtime = dbgtime
        self.e = Emit(); self.prof = prof; self.stop = stop; self.rot = rot; self.nst = 0; self.uid = 0; self.nmark = 0
    def stamp(self):
        self.e.c(f'@stamp{self.nmark}'); self.nmark += 1
        if self.prof:
            assert self.nst < 20
            r = 80 + self.nst
            self.e.auto = False
            op = 's_memtime' if self.prof == 2 and self.nst > 0 else 's_memrealtime'
            if self.prof == 2 and self.nst == 0: self.e('s_memtime s[78:79]')
            self.e(f'{op} s[76:77]\ns_waitcnt lgkmcnt(0)\ns_mov_b32 s{r}, s76')
            if self.prof == 2 and self.nst > 0: self.e(f's_sub_u32 s{r}, s{r}, s78')
            self.e.auto = True
            self.nst += 1
    def lab(self, n):
        self.uid += 1; return f'L_{n}_{self.uid}'

    def signal(self, sidx, tag):
        e = self.e; L = self.lab('sig')
        e.wait_tag(tag)
        e(f's_barrier\ns_cmp_lg_u32 s{sW}, 0\ns_cbranch_scc1 {L}')
        vm = list(e.vm)
        e(f's_mov_b64 exec, 1\nv_mov_b32 {v(vP)}, 1\nbuffer_atomic_add {v(vP)}, {v(vZ)}, {srd(SWS)}, s{sidx} offen sc1\ns_mov_b64 exec, -1')
        e.label(L)
        self.skew = True
    def poll(self, voff, mask, target_v, sbase):
        e = self.e; L = self.lab('poll'); X = self.lab('pollx')
        e(f's_mov_b64 exec, {mask}\ns_mov_b32 s3, 0')
        e.label(L)
        e.auto = False
        e(f's_add_u32 s3, s3, 1\ns_cmp_gt_u32 s3, {SPIN}\ns_cbranch_scc1 {X}')
        e(f'buffer_load_dword {v(vP)}, {voff}, {srd(SWS)}, {sbase} offen sc1\ns_waitcnt vmcnt(0)')
        e(f'v_cmp_gt_u32 vcc, {target_v}, {v(vP)}\ns_cbranch_vccnz {L} ; nottaken')
        e.label(X)
        e.auto = True
        e('s_waitcnt vmcnt(0)\ns_mov_b64 exec, -1')

    def check_issue(self, sbase):
        self.e(f'buffer_load_dword {v(vCK)}, {v(vZ)}, {srd(SWS)}, {sbase} offen sc1')
    def check_verify(self, target, sbase):
        e = self.e; X = self.lab('ck')
        e(f'v_readfirstlane_b32 s3, {v(vCK)}\ns_cmp_ge_u32 s3, {target}\ns_cbranch_scc1 {X} ; taken')
        sv = list(e.vm)
        self.poll(v(vZ), 1, target, sbase)
        e.label(X); e.vm = sv

    def gelu_pairs(self, pairs, tmp):
        e = self.e
        n = len(pairs)
        W = lambda i: tmp + 4 * i
        for i, (acc, cs, nm, A, B, ir, dst) in enumerate(pairs): e(f'v_pk_fma_f32 {v(W(i),2)}, {v(cs,2)}, {v(nm,2)}, {v(acc,2)}')
        for i, p in enumerate(pairs): e(f'v_pk_mul_f32 {v(W(i)+2,2)}, {v(W(i),2)}, {v(W(i),2)}')
        for i, p in enumerate(pairs): e(f'v_pk_fma_f32 {v(W(i)+2,2)}, {v(W(i)+2,2)}, {v(p[4],2)}, {v(p[3],2)}')
        for i, p in enumerate(pairs): e(f'v_pk_mul_f32 {v(W(i)+2,2)}, {v(W(i)+2,2)}, {v(W(i),2)}')
        for i, p in enumerate(pairs): e(f'v_exp_f32 {v(W(i)+2)}, {v(W(i)+2)}\nv_exp_f32 {v(W(i)+3)}, {v(W(i)+3)}')
        for i, p in enumerate(pairs): e(f'v_pk_fma_f32 {v(W(i)+2,2)}, {v(W(i)+2,2)}, {v(p[5],2)}, {v(p[5],2)}')
        for i, p in enumerate(pairs): e(f'v_rcp_f32 {v(W(i)+2)}, {v(W(i)+2)}\nv_rcp_f32 {v(W(i)+3)}, {v(W(i)+3)}')
        for i, p in enumerate(pairs): e(f'v_pk_mul_f32 {v(W(i),2)}, {v(W(i),2)}, {v(W(i)+2,2)}')
        for i, p in enumerate(pairs): e(f'v_cvt_pk_bf16_f32 {v(p[6])}, {v(W(i))}, {v(W(i)+1)}')
    def reduce_sq(self, S, Q, t):
        e = self.e
        e(f'v_permlane32_swap_b32 {v(S)}, {v(Q)}\nv_add_f32 {v(S)}, {v(S)}, {v(Q)}\nv_mov_b32 {v(t)}, {v(S)}')
        e(f'v_permlane16_swap_b32 {v(S)}, {v(t)}\nv_add_f32 {v(S)}, {v(S)}, {v(t)}')
    def token_consts(self, m, R, dst):
        e = self.e
        e(f'v_sub_f32 {v(dst)}, 0, {v(m)}\nv_mul_f32 {v(dst+2)}, {fbits(GA)}, {v(R)}\nv_mul_f32 {v(dst+4)}, {v(R)}, {v(R)}\nv_rcp_f32 {v(dst+6)}, {v(R)}')
        e(f'v_mov_b32 {v(dst+1)}, {v(dst)}\nv_mul_f32 {v(dst+4)}, {v(dst+4)}, {v(dst+2)}\nv_mov_b32 {v(dst+3)}, {v(dst+2)}\nv_mov_b32 {v(dst+7)}, {v(dst+6)}')
        e(f'v_mul_f32 {v(dst+4)}, {fbits(0.044715)}, {v(dst+4)}\nv_mov_b32 {v(dst+5)}, {v(dst+4)}')

    def setup(self):
        e = self.e
        e('s_cmp_ge_u32 s2, 256\ns_cbranch_scc1 L_end')
        if self.dbgtime: e('s_memrealtime s[78:79]')
        self.stamp()
        for r, off in ((SX, 0), (SW1, 56), (SWS, 104), (SDB, 96), (SK, 8), (SV, 16), (SSH, 24), (SSK, 32), (SSD, 40), (SW2, 64), (SW3, 72), (SW4, 80), (SO, 88)):
            e(f's_load_dwordx2 s[{r}:{r+1}], s[0:1], {off}')
        for r, sz in ((SX, 2 * MB), (SW1, MB // 2), (SWS, WS_SIZE), (SDB, 256), (SK, 2 * MB), (SV, 2 * MB), (SSH, 4096), (SSK, 2 * MB), (SSD, 1024),
                      (SW2, MB // 2), (SW3, 1792 * 1024), (SW4, 1792 * 1024), (SO, 2 * MB)):
            e(f's_mov_b32 s{r+2}, {sz}\ns_mov_b32 s{r+3}, 0x20000')
        e(f'''v_lshrrev_b32 v1, 6, v0
        v_and_b32 {v(vLN)}, 63, v0
        s_and_b32 s7, s2, 7
        v_readfirstlane_b32 s{sW}, v1 ; wave
        s_lshr_b32 s3, s2, 3
        s_lshr_b32 s{sTT}, s3, 3
        s_lshl_b32 s63, s7, 2
        s_add_u32 s{sTT}, s{sTT}, s63
        s_and_b32 s{sNT}, s3, 7
        s_lshr_b32 s{sT3}, s7, 1
        s_lshl_b32 s{sT3}, s{sT3}, 2
        s_lshr_b32 s63, s3, 3
        s_add_u32 s{sT3}, s{sT3}, s63
        s_and_b32 s{sN3}, s7, 1
        s_lshl_b32 s{sN3}, s{sN3}, 3
        s_add_u32 s{sN3}, s{sN3}, s{sNT}
        v_and_b32 {v(vJ)}, 15, v0
        v_lshrrev_b32 {v(vG)}, 4, {v(vLN)}
        v_bfe_u32 {v(vR)}, v0, 2, 2
        v_and_b32 {v(vCQ)}, 3, v0
        v_mov_b32 {v(vONE)}, 0x3f803f80
        v_mov_b32 {v(vZ)}, 0''')

    def phase1(self):
        e = self.e
        dX0, dX1, dW0, dW1 = T, T + 1, T + 2, T + 3
        aX = T + 4
        aW = T + 8
        ONES = T + 12
        ACC = T + 16
        CS = T + 32
        S, Q = T + 40, T + 41
        FX, FW = T + 44, T + 60
        TAP = T + 76
        FLG, DSK = T + 80, T + 81
        self.TAP, self.FLG = TAP, FLG
        e(f'''v_lshrrev_b32 v1, 3, {v(vLN)}
        v_and_b32 v2, 7, v0
        v_lshlrev_b32 v1, 10, v1
        v_xor_b32 v3, v2, {v(vG)}
        v_lshl_add_u32 {v(dX0)}, v3, 4, v1
        v_xor_b32 v3, 4, v3
        v_lshl_add_u32 {v(dX1)}, v3, 4, v1
        v_add_u32 {v(dX1)}, 8192, {v(dX1)}
        v_and_b32 v3, 1, {v(vG)}
        v_lshlrev_b32 v3, 1, v3
        v_xor_b32 v3, v3, v2
        v_lshl_add_u32 {v(dW0)}, v3, 4, v1
        v_xor_b32 v3, 4, v3
        v_lshl_add_u32 {v(dW1)}, v3, 4, v1
        s_lshl_b32 s64, s{sTT}, 16
        s_lshl_b32 s63, s{sW}, 14
        s_add_u32 s64, s64, s63
        s_lshl_b32 s65, s{sNT}, 7
        s_add_u32 s65, s65, s63
        s_lshl_b32 s66, s{sW}, 11''')
        e(f's_and_b32 s63, s{sW}, 1\ns_cmp_eq_u32 s63, 0\ns_cselect_b64 vcc, -1, 0\nv_cndmask_b32 {v(vWD)}, {v(dW1)}, {v(dW0)}, vcc')
        e(f'v_add_u32 {v(dW1)}, 8192, {v(dW1)}')
        if self.rot: e(f's_and_b32 s67, s{sTT}, 3\ns_lshl_b32 s67, s67, 1\ns_add_u32 s67, s67, s{sNT}\ns_and_b32 s67, s67, 7')
        else: e('s_mov_b32 s67, 0')
        def issue():
            e(f'''s_lshl_b32 s68, s67, 7
            s_add_u32 s68, s68, s64
            s_lshl_b32 s69, s67, 16
            s_add_u32 s69, s69, s65
            s_mov_b32 m0, s66
            buffer_load_dwordx4 {v(dX0)}, {srd(SX)}, s68 offen lds
            s_add_u32 m0, s66, 1024
            buffer_load_dwordx4 {v(dX1)}, {srd(SX)}, s68 offen lds
            s_add_u32 m0, s66, {R1}
            buffer_load_dwordx4 {v(dW0)}, {srd(SW1)}, s69 offen lds
            s_add_u32 m0, s66, {R1 + 1024}
            buffer_load_dwordx4 {v(dW1)}, {srd(SW1)}, s69 offen lds
            s_add_u32 s66, s66, 8192
            s_add_u32 s67, s67, 1
            s_and_b32 s67, s67, 7''')
        e('s_waitcnt lgkmcnt(0)')
        L = self.lab('init')
        e(f's_cmp_lg_u32 s2, 0\ns_cbranch_scc1 {L}')
        e(f'v_lshlrev_b32 v1, 7, v0\nv_cmp_gt_u32 vcc, {NCNT}, v0\nv_mov_b32 v2, 0x7fffffff\nv_cndmask_b32 v1, v2, v1, vcc')
        e(f'buffer_store_dword {v(vZ)}, v1, {srd(SWS)}, 0 offen sc1\ns_waitcnt vmcnt(0)\ns_barrier')
        e(f'v_mov_b32 v2, 1\nbuffer_store_dword v2, {v(vZ)}, {srd(SDB)}, 0 offen sc1\ns_waitcnt vmcnt(0)')
        e.label(L)
        e(f's_getpc_b64 s[70:71]')
        e.label('L_pc')
        e(f'''s_lshr_b32 s3, s2, 3
        s_lshl_b32 s3, s3, 2
        s_add_u32 s3, s3, s{sW}
        s_mul_i32 s3, s3, (L_end-L_pc+16383)/16384
        v_add_u32 v1, s3, {v(vLN)}
        v_min_u32 v1, (L_end-L_pc)/128, v1
        v_lshlrev_b32 v1, 7, v1
        s_mov_b32 exec_lo, (1<<((L_end-L_pc+16383)/16384))-1
        s_mov_b32 exec_hi, 0
        global_load_dword {v(DSK)}, v1, s[70:71]
        s_mov_b64 exec, -1''')
        issue(); issue()
        e(f'''s_lshr_b32 s63, s{sW}, 1
        s_lshl_b32 s63, s63, 12
        s_and_b32 s3, s{sW}, 1
        s_lshl_b32 s72, s3, 11
        v_lshrrev_b32 v1, 1, {v(vJ)}
        v_xor_b32 v1, v1, {v(vG)}
        v_lshlrev_b32 v1, 4, v1
        v_lshl_add_u32 v1, {v(vJ)}, 7, v1
        v_add_u32 v1, s63, v1
        v_add_u32 {v(aX)}, s72, v1
        s_xor_b32 s72, s72, 2048
        v_add_u32 {v(aX+2)}, s72, v1
        v_xor_b32 {v(aX+1)}, 64, {v(aX)}
        v_xor_b32 {v(aX+3)}, 64, {v(aX+2)}
        v_lshrrev_b32 v1, 1, {v(vR)}
        v_and_b32 v2, 1, {v(vG)}
        v_lshl_or_b32 v1, v2, 1, v1
        v_lshlrev_b32 v1, 1, v1
        v_lshrrev_b32 v2, 1, {v(vCQ)}
        v_xor_b32 v1, v1, v2
        v_lshlrev_b32 v1, 4, v1
        v_and_b32 v2, 1, {v(vCQ)}
        v_lshl_or_b32 v1, v2, 3, v1
        v_lshl_add_u32 v2, {v(vG)}, 3, {v(vR)}
        v_lshl_add_u32 v15, v2, 7, v1
        s_lshl_b32 s72, s3, 6
        v_xor_b32 {v(aW)}, s72, v15
        v_add_u32 {v(aW)}, {R1}, {v(aW)}
        v_xor_b32 {v(aW+1)}, 32, {v(aW)}''')
        self.vWstd = 15
        for i in range(4): e(f'v_mov_b32 {v(ONES+i)}, {v(vONE)}')
        for i in range(26): e(f'v_mov_b32 {v(ACC+i)}, 0')
        e(f's_mov_b32 s{sC}, 0')
        e.label('L_p1')
        e.auto = False
        e(f's_waitcnt vmcnt(4)\ns_barrier\ns_cmp_ge_u32 s{sC}, 6\ns_cbranch_scc1 L_p1alt')
        issue()
        e.label('L_p1c')
        for ks in range(2):
            for sl in range(2): e(f'ds_read_b128 {v(FX+8*ks+4*sl,4)}, {v(aX+2*sl+ks)}')
            for b in range(2):
                for hh in range(2): e(f'ds_read_b64_tr_b16 {v(FW+8*ks+4*b+2*hh,2)}, {v(aW+b)} offset:{(32*ks+4*hh)*128}')
        for ks in range(2):
            x0, x1, w0, w1 = FX + 8 * ks, FX + 8 * ks + 4, FW + 8 * ks, FW + 8 * ks + 4
            e(f's_waitcnt lgkmcnt({8 - 6*ks})')
            e(f'{MF} {v(ACC,4)}, {v(w0,4)}, {v(x0,4)}, {v(ACC,4)}')
            e(f'v_dot2_f32_bf16 {v(S)}, {v(x0)}, {v(vONE)}, {v(S)}\nv_dot2_f32_bf16 {v(Q)}, {v(x0)}, {v(x0)}, {v(Q)}')
            e(f'{MF} {v(ACC+8,4)}, {v(w0,4)}, {v(x1,4)}, {v(ACC+8,4)}')
            e(f'v_dot2_f32_bf16 {v(S)}, {v(x0+1)}, {v(vONE)}, {v(S)}\nv_dot2_f32_bf16 {v(Q)}, {v(x0+1)}, {v(x0+1)}, {v(Q)}')
            e(f'{MF} {v(CS,4)}, {v(w0,4)}, {v(ONES,4)}, {v(CS,4)}')
            e(f's_waitcnt lgkmcnt({6 - 6*ks})')
            e(f'{MF} {v(ACC+4,4)}, {v(w1,4)}, {v(x0,4)}, {v(ACC+4,4)}')
            e(f'v_dot2_f32_bf16 {v(S)}, {v(x0+2)}, {v(vONE)}, {v(S)}\nv_dot2_f32_bf16 {v(Q)}, {v(x0+2)}, {v(x0+2)}, {v(Q)}')
            e(f'{MF} {v(ACC+12,4)}, {v(w1,4)}, {v(x1,4)}, {v(ACC+12,4)}')
            e(f'v_dot2_f32_bf16 {v(S)}, {v(x0+3)}, {v(vONE)}, {v(S)}\nv_dot2_f32_bf16 {v(Q)}, {v(x0+3)}, {v(x0+3)}, {v(Q)}')
            e(f'{MF} {v(CS+4,4)}, {v(w1,4)}, {v(ONES,4)}, {v(CS+4,4)}')
        for r in (aX, aX + 1, aX + 2, aX + 3, aW, aW + 1): e(f'v_add_u32 {v(r)}, 8192, {v(r)}')
        e(f's_add_u32 s{sC}, s{sC}, 1\ns_cmp_lt_u32 s{sC}, 8\ns_cbranch_scc1 L_p1\ns_branch L_p1done')
        e.label('L_p1alt')
        e(f'''v_lshrrev_b32 v1, 3, {v(vLN)}
        v_and_b32 v2, 7, v0
        v_lshlrev_b32 v1, 10, v1
        v_lshl_add_u32 v1, v2, 4, v1
        s_lshl_b32 s68, s{sTT}, 16
        s_lshl_b32 s69, s{sNT}, 7
        s_add_u32 s68, s68, s69
        s_cmp_eq_u32 s{sC}, 7
        s_cbranch_scc1 L_p1alt2
        s_lshl_b32 s69, s{sW}, 14
        s_add_u32 s68, s68, s69
        s_lshl_b32 s63, s{sW}, 11
        s_lshl_b32 s3, s{sW}, 5''')
        for i in range(2):
            e(f's_add_u32 s72, s3, {16*(i+1)}\ns_and_b32 s72, s72, 0x70\nv_xor_b32 v2, s72, v1\ns_add_u32 m0, s63, {KIN + 1024*(i+1)}')
            e(f'buffer_load_dwordx4 v2, {srd(SK)}, s68 offen lds')
            e(f's_add_u32 s72, s3, {16*i}\nv_xor_b32 v2, s72, v1\ns_add_u32 m0, s63, {VIN + 1024*i}')
            e(f'buffer_load_dwordx4 v2, {srd(SV)}, s68 offen lds')
            if i == 0: e('s_add_u32 s68, s68, 8192')
        e('s_branch L_p1c')
        e.label('L_p1alt2')
        e(f'''s_cmp_eq_u32 s{sTT}, 0
        s_cselect_b32 s69, 0x7ff00000, 0
        s_cselect_b32 s72, 0, 8192
        s_sub_u32 s68, s68, s72
        v_add_u32 v1, s69, v1
        s_mov_b32 m0, {KIN}
        v_lshrrev_b32 v2, 3, {v(vLN)}
        buffer_load_dwordx4 v1, {srd(SK)}, s68 offen lds
        v_lshlrev_b32 v2, 4, v2
        s_lshl_b32 s68, s{sNT}, 9
        s_lshl_b32 s69, s{sW}, 7
        s_add_u32 s68, s68, s69
        buffer_load_dwordx4 {v(TAP,4)}, v2, {srd(SSH)}, s68 offen
        buffer_load_dword {v(FLG)}, {v(vZ)}, {srd(SDB)}, 0 offen sc1
        buffer_load_dword {v(DSK)}, {v(vZ)}, {srd(SDB)}, 0 offen sc1
        s_branch L_p1c''')
        e.label('L_p1done')
        e.vm = [(set(), 'kv'), ({('v', TAP + i) for i in range(4)}, None), ({('v', FLG)}, None), ({('v', DSK)}, None)]; e.lg = []
        e.auto = True
        self.stamp()
        t0 = FX
        self.reduce_sq(S, Q, t0)
        e(f'''v_mov_b32 {v(Q)}, {v(S)}
        v_permlane32_swap_b32 {v(S)}, {v(Q)}
        v_mul_f32 {v(S)}, {fbits(1/512)}, {v(S)}
        v_mul_f32 {v(t0)}, {v(S)}, {v(S)}
        v_mov_b32 {v(t0+1)}, {fbits(1/512)}
        v_fma_f32 {v(Q)}, {v(Q)}, {v(t0+1)}, -{v(t0)}
        v_max_f32 {v(Q)}, 0, {v(Q)}
        v_add_f32 {v(t0)}, {fbits(1e-5)}, {v(Q)}
        v_rsq_f32 {v(t0+2)}, {v(t0)}
        v_rcp_f32 {v(t0)}, {v(t0)}
        v_mov_b32 {v(t0+1)}, {fbits(1e-5)}
        v_fma_f32 {v(t0)}, {v(Q)}, {v(t0)}, {v(t0+1)}
        v_rsq_f32 {v(t0)}, {v(t0)}
        s_lshl_b32 s63, s{sW}, 7
        s_add_u32 s63, s63, {STX}
        v_lshlrev_b32 v2, 3, {v(vJ)}
        v_add_u32 v2, s63, v2
        v_mul_f32 {v(Q)}, {v(t0)}, {v(t0+2)}
        ds_write_b64 v2, {v(S,2)}''')
        R1v = t0 + 2
        e(f'''s_sub_u32 s63, s{sNT}, s67
        s_and_b32 s63, s63, 7
        s_lshl_b32 s63, s63, 13
        s_lshl_b32 s3, s{sW}, 11
        s_add_u32 s63, s63, s3
        v_lshrrev_b32 v3, 1, {v(vJ)}
        v_lshrrev_b32 v4, 1, {v(vG)}
        v_xor_b32 v3, v3, v4
        v_lshlrev_b32 v3, 4, v3
        v_and_b32 v4, 1, {v(vG)}
        v_lshl_or_b32 v3, v4, 3, v3
        v_lshl_add_u32 v3, {v(vJ)}, 7, v3
        v_add_u32 v3, s63, v3''')
        XR = FW
        for t in range(4):
            e(f'v_xor_b32 v4, {32*t}, v3\nds_read_b64 {v(XR+2*t,2)}, v4')
        e(f'v_xor_b32 v2, 128, v2\ns_waitcnt lgkmcnt(0)\ns_barrier')
        OT = t0 + 4
        e(f'ds_read_b64 {v(OT,2)}, v2')
        K0, K1 = t0 + 8, FW + 8
        self.token_consts(S, Q, K0)
        self.token_consts(OT, OT + 1, K1)
        PK = T + 84; TMP = T + 92
        e(f'''s_and_b32 s3, s{sW}, 1
        s_lshl_b32 s63, s{sNT}, 1
        s_add_u32 s63, s63, s3
        s_lshl_b32 s63, s63, 17
        s_lshl_b32 s3, s{sTT}, 10
        s_add_u32 s63, s63, s3
        s_add_u32 s63, s63, {WS_H}
        s_lshl_b32 s3, s{sW}, 8
        v_lshlrev_b32 v1, 15, {v(vG)}
        v_lshl_add_u32 v1, {v(vJ)}, 4, v1
        v_add_u32 v5, s3, v1
        v_xor_b32 v6, 256, v5''')
        for sl, K in ((0, K0), (1, K1)):
            self.gelu_pairs([(ACC + 8 * sl + 2 * p, CS + 2 * p, K, K + 2, K + 4, K + 6, PK + 4 * sl + p) for p in range(4)], TMP)
            e(f'buffer_store_dwordx4 {v(PK+4*sl,4)}, {v(5+sl)}, {srd(SWS)}, s63 offen sc1', tag='st')
        self.p1 = (XR, S, R1v)

    def w2_dma(self, lo, hi):
        e = self.e
        for i in range(lo, hi):
            e(f's_add_u32 m0, s73, {R1 + 4096*i}\nbuffer_load_dwordx4 v7, {srd(SW2)}, s74 offen lds\ns_add_u32 s74, s74, 32768', tag='w2')
    def w3_dma(self, step_lo, n):
        e = self.e
        for q in range(n):
            st = step_lo + 4 * q
            e(f's_add_u32 s63, s{sW}, {st}\ns_mul_i32 s72, s63, {32*3584}\ns_mul_i32 s3, s{sN3}, 224\ns_add_u32 s72, s72, s3\ns_mul_i32 s63, s{sW}, 7168')
            base = (R0 if st < 8 else R1) + (st % 8) * 7168
            for i in range(7):
                e(f's_add_u32 m0, s63, {base + 1024*i}\nbuffer_load_dwordx4 {v(8+i)}, {srd(SW3)}, s72 offen lds', tag='w3')

    def window1(self):
        e = self.e
        XR, S, R1v = self.p1
        e(f'''v_lshrrev_b32 v1, 3, {v(vLN)}
        v_and_b32 v2, 7, v0
        v_and_b32 v3, 6, v1
        v_xor_b32 v2, v2, v3
        v_lshlrev_b32 v1, 10, v1
        v_lshl_add_u32 v7, v2, 4, v1
        s_lshl_b32 s73, s{sW}, 10
        s_lshl_b32 s74, s{sW}, 13
        s_lshl_b32 s3, s{sNT}, 7
        s_add_u32 s74, s74, s3''')
        self.w2_dma(0, 6)
        L = self.lab('ini'); X = self.lab('inix')
        e(f'v_readfirstlane_b32 s3, {v(self.FLG)}\ns_cmp_lg_u32 s3, 0\ns_cbranch_scc1 {X} ; taken')
        sv = list(e.vm)
        e('s_mov_b32 s63, 0')
        e.label(L); e.auto = False
        e(f's_add_u32 s63, s63, 1\ns_cmp_gt_u32 s63, {SPIN}\ns_cbranch_scc1 {X}')
        e(f'buffer_load_dword v1, {v(vZ)}, {srd(SDB)}, 0 offen sc1\ns_waitcnt vmcnt(0)\nv_readfirstlane_b32 s3, v1\ns_cmp_eq_u32 s3, 0\ns_cbranch_scc1 {L} ; nottaken')
        e.label(X); e.auto = True; e.vm = sv
        e(f's_lshl_b32 s75, s{sTT}, 7\ns_add_u32 s75, s75, {C1*128}')
        self.signal(75, 'st')
        self.stamp()
        e.vm = [(set(), 'w2')] * 7
        self.w2_dma(6, 16)
        for i in range(8):
            e(f'v_lshlrev_b32 {v(XF+2*i)}, 16, {v(XR+i)}\nv_and_b32 {v(XF+2*i+1)}, 0xffff0000, {v(XR+i)}')
        for i in range(16): e(f'v_sub_f32 {v(XN+i)}, {v(XF+i)}, {v(S)}')
        for i in range(16): e(f'v_mul_f32 {v(XN+i)}, {v(XN+i)}, {v(R1v)}')
        TAP = self.TAP
        KR, VR, TP, KF, VF, AC, PK = T, T + 12, T + 20, T + 28, T + 84, T + 100, T + 116
        e(f'''v_and_b32 v1, 7, v0
        v_lshrrev_b32 v2, 3, {v(vLN)}
        v_lshrrev_b32 v3, 2, v2
        s_lshl_b32 s3, s{sW}, 1
        v_add_u32 v3, s3, v3
        v_and_b32 v2, 3, v2
        v_lshlrev_b32 v2, 2, v2
        v_lshl_add_u32 v2, v1, 10, v2
        v_xor_b32 v4, v3, v1
        v_lshl_add_u32 v4, v4, 4, v2
        v_add_u32 v5, 1, v1
        v_and_b32 v5, 7, v5
        v_xor_b32 v5, v3, v5
        v_lshl_add_u32 v5, v5, 4, v2
        v_add_u32 v4, {R2}, v4
        v_add_u32 v5, {R2}, v5''')
        for i in range(11): e(f'ds_read_b32 {v(KR+i)}, {v(4 if i < 3 else 5)} offset:{KIN - R2 + (5+i)*128}')
        for i in range(8): e(f'ds_read_b32 {v(VR+i)}, v4 offset:{VIN - R2 + i*128}')
        for j in range(4):
            for ch in range(2):
                src = TAP + 2 * ch + (j >> 1)
                e(f'v_and_b32 {v(TP+2*j+ch)}, 0xffff0000, {v(src)}' if j & 1 else f'v_lshlrev_b32 {v(TP+2*j+ch)}, 16, {v(src)}')
        for i in range(11): e(f'v_lshlrev_b32 {v(KF+2*i)}, 16, {v(KR+i)}\nv_and_b32 {v(KF+2*i+1)}, 0xffff0000, {v(KR+i)}')
        for i in range(8): e(f'v_lshlrev_b32 {v(VF+2*i)}, 16, {v(VR+i)}\nv_and_b32 {v(VF+2*i+1)}, 0xffff0000, {v(VR+i)}')
        for t in range(8): e(f'v_pk_mul_f32 {v(AC+2*t,2)}, {v(KF+2*t,2)}, {v(TP+6,2)}')
        for j in (2, 1, 0):
            for t in range(8): e(f'v_pk_fma_f32 {v(AC+2*t,2)}, {v(KF+2*(t+3-j),2)}, {v(TP+2*j,2)}, {v(AC+2*t,2)}')
        for t in range(8): e(f'v_pk_mul_f32 {v(AC+2*t,2)}, {v(AC+2*t,2)}, {v(VF+2*t,2)}')
        for ch in range(2):
            for p in range(4): e(f'v_cvt_pk_bf16_f32 {v(PK+4*ch+p)}, {v(AC+4*p+ch)}, {v(AC+4*p+2+ch)}')
        e(f'''v_lshrrev_b32 v2, 3, {v(vLN)}
        v_lshlrev_b32 v2, 13, v2
        v_lshl_add_u32 v2, v1, 4, v2
        v_add_u32 v3, 4096, v2
        s_lshl_b32 s63, s{sNT}, 18
        s_lshl_b32 s3, s{sW}, 16
        s_add_u32 s63, s63, s3
        s_lshl_b32 s3, s{sTT}, 7
        s_add_u32 s63, s63, s3
        s_add_u32 s63, s63, {WS_KVT}''')
        e(f'buffer_store_dwordx4 {v(PK,4)}, v2, {srd(SWS)}, s63 offen sc1', tag='st')
        e(f'buffer_store_dwordx4 {v(PK+4,4)}, v3, {srd(SWS)}, s63 offen sc1', tag='st')
        for i in range(7):
            e(f'v_add_u32 v1, {64*i}, {v(vLN)}\nv_mul_u32_u24 v2, 4682, v1\nv_lshrrev_b32 v2, 16, v2\nv_mul_u32_u24 v3, 14, v2\nv_sub_u32 v3, v1, v3')
            e(f'v_mul_u32_u24 v2, 3584, v2\nv_lshl_add_u32 {v(8+i)}, v3, 4, v2')
        e(f's_lshl_b32 s75, s{sNT}, 7\ns_add_u32 s75, s75, {CA*128}')
        self.signal(75, 'st')
        e.vm = [(set(), None)]
        self.w3_dma(0, 1)
        self.stamp()

    def phase2(self):
        e = self.e
        aW, dH, ACC, FH, FW = T, T + 4, T + 8, T + 24, T + 56
        e(f'''v_lshl_add_u32 v1, {v(vG)}, 2, {v(vR)}
        v_and_b32 v2, 6, v1
        v_lshrrev_b32 v3, 1, {v(vCQ)}
        v_xor_b32 v2, v2, v3
        v_lshlrev_b32 v2, 4, v2
        v_and_b32 v3, 1, {v(vCQ)}
        v_lshl_or_b32 v2, v3, 3, v2
        v_lshl_add_u32 v1, v1, 7, v2
        v_add_u32 {v(aW)}, {R1}, v1
        s_lshl_b32 s63, s{sTT}, 6
        s_lshl_b32 s3, s{sW}, 4
        s_add_u32 s63, s63, s3
        v_add_u32 v1, s63, {v(vJ)}
        v_lshlrev_b32 v2, 15, {v(vG)}
        v_mov_b32 v4, 0x7ff00000
        s_movk_i32 s3, 2048''')
        for t in range(1, 4): e(f'v_xor_b32 {v(aW+t)}, {32*t}, {v(aW)}')
        for g, d in enumerate((-1, 1, -2, 2)):
            e(f'v_add_u32 v3, {d}, v1\nv_cmp_gt_u32 vcc, s3, v3\nv_lshl_add_u32 v3, v3, 4, v2\nv_cndmask_b32 {v(dH+g)}, v4, v3, vcc')
        e(f'''v_add_u32 v2, s{sTT}, {v(vLN)}
        v_subrev_u32 v2, 1, v2
        v_max_i32 v2, 0, v2
        v_min_i32 v2, 31, v2
        v_lshlrev_b32 v2, 7, v2''')
        e.wait_tag('w2')
        L = self.lab('p2w')
        e(f's_cmp_lg_u32 s{sW}, 0\ns_cbranch_scc1 {L}')
        self.poll('v2', 7, 8, str(C1 * 128) if C1 else '0')
        e.label(L)
        e('s_barrier')
        e.vm = [(set(), 'w3')] * 7
        self.stamp()
        e(f's_mov_b32 s63, {WS_H}')
        def ldh(s): e(f'buffer_load_dwordx4 {v(FH+4*(s%8),4)}, {v(dH+s//4)}, {srd(SWS)}, s63 offen sc1\ns_add_u32 s63, s63, 131072')
        def ldw(s):
            for t in range(4):
                for hh in range(2): e(f'ds_read_b64_tr_b16 {v(FW+16*(s%2)+4*t+2*hh,2)}, {v(aW+t)} offset:{(32*s+16*hh)*128}')
        for s in range(8): ldh(s)
        ldw(0)
        for s in range(16):
            if s < 15: ldw(s + 1)
            for t in range(4):
                c = v(ACC + 4 * t, 4) if s else '0'
                e(f'{MF} {v(ACC+4*t,4)}, {v(FW+16*(s%2)+4*t,4)}, {v(FH+4*(s%8),4)}, {c}')
            if s < 8: ldh(s + 8)
        self.stamp()
        for p in range(8): e(f'v_pk_add_f32 {v(ACC+2*p,2)}, {v(ACC+2*p,2)}, {v(XN+2*p,2)}')
        for p in range(8): e(f'v_cvt_pk_bf16_f32 {v(X1P+p)}, {v(ACC+2*p)}, {v(ACC+2*p+1)}')
        e(f'''s_lshl_b32 s63, s{sNT}, 18
        s_lshl_b32 s3, s{sTT}, 10
        s_add_u32 s63, s63, s3
        s_lshl_b32 s3, s{sW}, 8
        s_add_u32 s63, s63, s3
        s_add_u32 s63, s63, {WS_X1}
        s_add_u32 s64, s63, 131072
        v_lshlrev_b32 v1, 15, {v(vG)}
        v_lshl_add_u32 v1, {v(vJ)}, 4, v1''')
        e(f'buffer_store_dwordx4 {v(X1P,4)}, v1, {srd(SWS)}, s63 offen sc1', tag='st')
        e(f'buffer_store_dwordx4 {v(X1P+4,4)}, v1, {srd(SWS)}, s64 offen sc1', tag='st')
        S, Q = FH, FH + 1
        e(f'v_dot2_f32_bf16 {v(S)}, {v(X1P)}, {v(vONE)}, 0\nv_dot2_f32_bf16 {v(Q)}, {v(X1P)}, {v(X1P)}, 0')
        for p in range(1, 8): e(f'v_dot2_f32_bf16 {v(S)}, {v(X1P+p)}, {v(vONE)}, {v(S)}\nv_dot2_f32_bf16 {v(Q)}, {v(X1P+p)}, {v(X1P+p)}, {v(Q)}')
        e('s_nop 2')
        self.reduce_sq(S, Q, FH + 2)
        e(f'''s_lshl_b32 s63, s{sNT}, 14
        s_lshl_b32 s3, s{sTT}, 9
        s_add_u32 s63, s63, s3
        s_lshl_b32 s3, s{sW}, 7
        s_add_u32 s63, s63, s3
        s_add_u32 s63, s63, {WS_ST}
        v_lshrrev_b32 v2, 1, {v(vG)}
        v_lshlrev_b32 v2, 6, v2
        v_lshl_add_u32 v2, {v(vJ)}, 2, v2
        s_mov_b32 exec_lo, 0xffff
        s_mov_b32 exec_hi, 0xffff''')
        e(f'buffer_store_dword {v(S)}, v2, {srd(SWS)}, s63 offen sc1', tag='st')
        e(f's_mov_b64 exec, -1\ns_lshl_b32 s75, s{sTT}, 7\ns_add_u32 s75, s75, {C2*128}')
        self.signal(75, 'st')
        self.stamp()

    def window2(self):
        e = self.e
        e.vm = [(set(), None)]
        self.w3_dma(4, 3)
        aW = T
        self.aW3 = aW
        e(f'''v_lshl_add_u32 v1, {v(vG)}, 2, {v(vR)}
        v_mul_u32_u24 v1, 224, v1
        v_lshl_add_u32 {v(aW)}, {v(vCQ)}, 3, v1
        v_add_u32 {v(aW+1)}, {R1}, {v(aW)}''')
        ONES, CA_, F = T + 4, T + 8, T + 16
        for i in range(4): e(f'v_mov_b32 {v(ONES+i)}, {v(vONE)}')
        e(f'''s_lshl_b32 s3, s{sW}, 5
        s_add_u32 s63, s3, 128
        s_min_u32 s63, s63, 192
        v_add_u32 v1, s3, {v(aW)}
        v_add_u32 v2, s63, {v(aW)}
        v_add_u32 v3, {R1}, v1
        v_add_u32 v4, {R1}, v2
        s_waitcnt vmcnt(0)
        s_barrier''')
        def rd(s):
            for t in range(2):
                for hh in range(2): e(f'ds_read_b64_tr_b16 {v(F+8*(s%4)+4*t+2*hh,2)}, {v(1+t+(2 if s >= 8 else 0))} offset:{(s%8)*7168+hh*3584}')
        for s in range(3): rd(s)
        for s in range(16):
            if s + 3 < 16: rd(s + 3)
            for t in range(2):
                c = v(CA_ + 4 * t, 4) if s else '0'
                e(f'{MF} {v(CA_+4*t,4)}, {v(F+8*(s%4)+4*t,4)}, {v(ONES,4)}, {c}')
        e(f'''v_lshlrev_b32 v1, 4, {v(vG)}
        s_lshl_b32 s3, s3, 1
        s_lshl_b32 s63, s63, 1
        v_add_u32 v2, s63, v1
        v_add_u32 v1, s3, v1
        v_add_u32 v1, {CSX}, v1
        v_add_u32 v2, {CSX}, v2
        s_mov_b32 exec_lo, 0x00010001
        s_mov_b32 exec_hi, 0x00010001
        ds_write_b128 v1, {v(CA_,4)}
        ds_write_b128 v2, {v(CA_+4,4)}
        s_mov_b64 exec, -1
        v_lshlrev_b32 v1, 4, {v(vG)}
        v_add_u32 v1, {CSX}, v1
        s_waitcnt lgkmcnt(0)
        s_barrier''')
        self.CS3 = T + 4
        for t in range(7): e(f'ds_read_b128 {v(self.CS3+4*t,4)}, v1 offset:{64*t}')
        self.stamp()

    def phase3(self):
        e = self.e
        aW = self.aW3; CS = self.CS3
        dX, aC, aN = T + 2, T + 32, T + 33
        ACC, FX, FW, ST = T + 36, T + 92, T + 124, T + 180
        e(f'''s_lshl_b32 s63, s{sT3}, 7
        s_lshl_b32 s3, s{sW}, 5
        s_add_u32 s63, s63, s3
        v_add_u32 v1, s63, {v(vJ)}
        v_lshlrev_b32 v2, 15, {v(vG)}
        v_lshl_add_u32 {v(dX)}, v1, 4, v2
        s_lshl_b32 s64, s63, 3
        s_add_u32 s64, s64, {WS_ST}
        v_lshlrev_b32 v2, 15, {v(vG)}
        v_lshl_add_u32 v2, {v(vJ)}, 2, v2
        v_add_u32 v3, 16384, v2
        s_lshl_b32 s65, s{sT3}, 1
        s_lshr_b32 s3, s{sW}, 1
        s_add_u32 s65, s65, s3
        s_lshl_b32 s65, s65, 7
        s_add_u32 s65, s65, {C2*128}
        v_mov_b32 {v(aC)}, {v(aW)}''')
        for i in range(56): e(f'v_mov_b32 {v(ACC+i)}, 0')
        def ldw(buf, reg, off):
            for t in range(7):
                for hh in range(2): e(f'ds_read_b64_tr_b16 {v(FW+28*buf+4*t+2*hh,2)}, {v(reg)} offset:{off+hh*3584+32*t}')
        ldw(0, aC, 0)
        self.poll(v(vZ), 1, 8, 's65')
        self.stamp()
        for a_ in range(2):
            for h in range(2):
                for q in range(2): e(f'buffer_load_dword {v(ST+4*a_+2*h+q)}, {v(2+h)}, {srd(SWS)}, s64 offen offset:{128*a_+64*q} sc1')
        e(f's_mov_b32 s63, {WS_X1}')
        def ldx(u):
            for a_ in range(2): e(f'buffer_load_dwordx4 {v(FX+8*u+4*a_,4)}, {v(dX)}, {srd(SWS)}, s63 offen offset:{256*a_} sc1')
            e('s_add_u32 s63, s63, 131072')
        for u in range(4): ldx(u)
        e(f's_mov_b32 s{sC}, 0\ns_mov_b32 s66, 28672')
        e.label('L_p3')
        e.auto = False
        e(f's_cmp_eq_u32 s{sC}, 1\ns_cselect_b32 s3, {R1 - 28672}, s66\nv_add_u32 {v(aN)}, s3, {v(aC)}')
        for u in range(4):
            e('s_waitcnt vmcnt(6) lgkmcnt(0)')
            k = 0
            rds = [(t, hh) for t in range(7) for hh in range(2)]
            for t in range(7):
                for a_ in range(2):
                    e(f'{MF} {v(ACC+28*a_+4*t,4)}, {v(FW+28*(u%2)+4*t,4)}, {v(FX+8*u+4*a_,4)}, {v(ACC+28*a_+4*t,4)}')
                    tt_, hh = rds[k]; k += 1
                    reg, off = (aC, (u + 1) * 7168) if u < 3 else (aN, 0)
                    e(f'ds_read_b64_tr_b16 {v(FW+28*((u+1)%2)+4*tt_+2*hh,2)}, {v(reg)} offset:{off+hh*3584+32*tt_}')
            ldx(u)
        e(f'v_mov_b32 {v(aC)}, {v(aN)}\ns_add_u32 s{sC}, s{sC}, 1\ns_cmp_lt_u32 s{sC}, 4')
        e(f's_cbranch_scc0 L_p3done\ns_cmp_lt_u32 s{sC}, 3\ns_cbranch_scc1 L_p3\ns_mov_b32 s63, {WS_SIZE}\ns_branch L_p3')
        e.label('L_p3done')
        e('s_waitcnt vmcnt(0) lgkmcnt(0)')
        e.auto = True
        self.stamp()
        e(f's_lshr_b32 s3, s2, 5\ns_lshl_b32 s3, s3, 7\ns_add_u32 s72, s3, {CA*128}\ns_add_u32 s73, s3, {CY*128}')
        self.check_issue('s72')
        e('s_barrier')
        e(f'''s_lshl_b32 s66, s{sW}, 13
        s_lshl_b32 s3, s{sNT}, 7
        s_add_u32 s66, s66, s3
        s_add_u32 s67, s66, {896*1024}
        s_lshl_b32 s68, s{sW}, 10''')
        K = [FX, FX + 8]
        for a_ in range(2):
            s_, q_ = ST + 4 * a_, ST + 4 * a_ + 1
            e(f'v_add_f32 {v(s_)}, {v(s_)}, {v(s_+2)}\nv_add_f32 {v(q_)}, {v(q_)}, {v(q_+2)}')
            self.reduce_sq(s_, q_, s_ + 2)
            e(f'''v_mov_b32 {v(q_)}, {v(s_)}
            v_permlane32_swap_b32 {v(s_)}, {v(q_)}
            v_mul_f32 {v(s_)}, {fbits(1/512)}, {v(s_)}
            v_mul_f32 {v(s_+2)}, {v(s_)}, {v(s_)}
            v_mov_b32 {v(s_+3)}, {fbits(1/512)}
            v_fma_f32 {v(q_)}, {v(q_)}, {v(s_+3)}, -{v(s_+2)}
            v_max_f32 {v(q_)}, 0, {v(q_)}
            v_add_f32 {v(q_)}, {fbits(1e-5)}, {v(q_)}
            v_rsq_f32 {v(q_)}, {v(q_)}''')
            self.token_consts(s_, q_, K[a_])
        e(f'''s_mul_i32 s63, s{sN3}, {14*32768}
        s_lshl_b32 s3, s{sT3}, 11
        s_add_u32 s63, s63, s3
        s_lshl_b32 s3, s{sW}, 9
        s_add_u32 s63, s63, s3
        s_add_u32 s63, s63, {WS_H2}
        v_lshrrev_b32 v1, 1, {v(vG)}
        v_lshlrev_b32 v1, 15, v1
        v_and_b32 v2, 31, v0
        v_lshl_add_u32 v1, v2, 4, v1''')
        TMP, PK = FW, FW + 16
        self.w4n = 0
        for t in range(7):
            pk = PK + 4 * (t % 2)
            self.gelu_pairs([(ACC + 28 * a_ + 4 * t + 2 * p, CS + 4 * t + 2 * p, K[a_], K[a_] + 2, K[a_] + 4, K[a_] + 6, pk + 2 * a_ + p)
                             for a_ in range(2) for p in range(2)], TMP)
            e(f'v_permlane16_swap_b32 {v(pk)}, {v(pk+2)}\nv_permlane16_swap_b32 {v(pk+1)}, {v(pk+3)}')
            e(f'buffer_store_dwordx4 {v(pk,4)}, v1, {srd(SWS)}, s63 offen sc1\ns_add_u32 s63, s63, 65536', tag='st')
            self.w4_dma(2 if t < 6 else 1)
        e(f's_lshl_b32 s75, s{sT3}, 7\ns_add_u32 s75, s75, {C3*128}')
        self.signal(75, 'st')
        self.stamp()
    def w4_dma(self, nsteps):
        e = self.e
        for _ in range(nsteps):
            sg = self.w4n; self.w4n += 1
            slot = sg if sg < 16 else sg - 16
            e(f's_add_u32 m0, s68, {slot*8192}\nbuffer_load_dwordx4 {v(vWD)}, {srd(SW4)}, s66 offen lds\ns_add_u32 s66, s66, 32768', tag='w4')
            e(f's_add_u32 m0, s68, {slot*8192+4096}\nbuffer_load_dwordx4 {v(vWD)}, {srd(SW4)}, s67 offen lds\ns_add_u32 s67, s67, 32768', tag='w4')

    def window3(self):
        e = self.e
        e.vm = [(set(), 'w4')] * 3
        self.w4_dma(16 - self.w4n)
        e(f'''v_lshlrev_b32 v1, 4, {v(vLN)}
        s_lshl_b32 s63, s2, 13
        s_lshl_b32 s3, s{sW}, 11
        s_add_u32 s63, s63, s3
        s_lshr_b32 s64, s{sW}, 1
        s_and_b32 s65, s{sW}, 1
        s_lshl_b32 s69, s64, 5
        s_add_u32 s69, s69, s3
        s_lshl_b32 s70, s64, 8
        s_add_u32 s70, s70, s3
        s_lshl_b32 s71, s2, 2
        s_lshl_b32 s3, s64, 1
        s_add_u32 s71, s71, s3''')
        DV = T + 4
        e(f'buffer_load_ushort {v(DV)}, {v(vZ)}, {srd(SSD)}, s71 offen')
        for i in range(2): e(f's_add_u32 m0, s69, {HB + 32}\nbuffer_load_dwordx4 v1, {srd(SSK)}, s63 offen offset:{1024*i} lds', tag='cv')
        e(f's_add_u32 s63, s63, {WS_KVT}')
        self.check_verify(32, 's72')
        for i in range(2): e(f's_add_u32 m0, s70, {UB + 256}\nbuffer_load_dwordx4 v1, {srd(SWS)}, s63 offen offset:{1024*i} sc1 lds', tag='cv')
        e(f'''v_mov_b32 v4, 0
        v_mov_b32 v5, 0
        v_mov_b32 v6, 0
        v_mov_b32 v7, 0
        s_mul_i32 s3, s64, 4352
        v_add_u32 v2, s3, v1
        v_add_u32 v2, {UB}, v2
        s_mul_i32 s3, s64, 4128
        v_add_u32 v3, s3, v1
        v_add_u32 v3, {HB}, v3
        s_mov_b64 exec, 0xffff
        ds_write_b128 v2, v[4:7]
        s_mov_b64 exec, 3
        ds_write_b128 v3, v[4:7]
        s_mul_i32 s3, s64, 528
        v_mov_b32 v2, s3
        v_add_u32 v2, {CARR}, v2
        s_mov_b64 exec, 1
        ds_write_b128 v2, v[4:7]
        s_mov_b64 exec, -1''')
        aW = T
        self.aW4 = aW
        e(f's_lshl_b32 s3, s65, 12\nv_add_u32 {v(aW)}, s3, {v(self.vWstd)}')
        for t in range(1, 4): e(f'v_xor_b32 {v(aW+t)}, {32*t}, {v(aW)}')
        e('s_waitcnt vmcnt(0) lgkmcnt(0)\ns_barrier')
        e.auto = False
        for sg in range(12):
            if sg == 8:
                for t in range(4): e(f'v_add_u32 {v(aW+t)}, 65536, {v(aW+t)}')
            for t in range(4):
                for hh in range(2): e(f'ds_read_b64_tr_b16 {a(16*sg+4*t+2*hh,2)}, {v(aW+t)} offset:{(sg%8)*8192+hh*512}')
        e('s_waitcnt lgkmcnt(0)\ns_barrier')
        e.auto = True
        self.stamp()
        aH, aU, ACC, FU = T + 5, T + 6, T + 8, T + 72
        FH = 192
        e(f'''v_lshl_add_u32 v1, {v(vG)}, 3, {v(vR)}
        v_add_u32 v1, v1, {v(vCQ)}
        v_lshlrev_b32 v1, 3, v1
        s_mul_i32 s3, s64, 4128
        s_add_u32 s3, s3, {HB + 8}
        v_add_u32 {v(aH)}, s3, v1
        v_lshlrev_b32 v1, 5, {v(vCQ)}
        v_lshlrev_b32 v2, 6, {v(vG)}
        v_sub_u32 v1, v1, v2
        v_lshlrev_b32 v2, 3, {v(vR)}
        v_sub_u32 v1, v1, v2
        s_mul_i32 s3, s64, 4352
        s_lshl_b32 s63, s65, 7
        s_add_u32 s3, s3, s63
        s_add_u32 s3, s3, {UB + 256 + 24 - 32}
        v_add_u32 {v(aU)}, s3, v1''')
        def rdf(q):
            for hh in range(2): e(f'ds_read_b64_tr_b16 {a(FH+4*q+2*hh,2)}, {v(aH)} offset:{256*q+32*hh}')
            for hh in range(2): e(f'ds_read_b64_tr_b16 {v(FU+4*q+2*hh,2)}, {v(aU)} offset:{256*q+32-32*hh}')
        def horner(J):
            d = ACC + 4 * J
            return [f'v_add_f32_dpp {v(d+k)}, {v(d+k+1)}, {v(d+k)} wave_shr:1 row_mask:0xf bank_mask:0xf bound_ctrl:0' for k in (2, 1, 0)]
        rdf(0); rdf(1)
        pend = []
        n = 0
        for J in range(16):
            if J + 2 < 16: rdf(J + 2)
            for q in range(J + 1):
                c = v(ACC + 4 * J, 4) if q else '0'
                e(f'{MF} {v(ACC+4*J,4)}, {v(FU+4*(J-q),4)}, {a(FH+4*q,4)}, {c}')
                n += 1
                if n % 10 == 0 and self.w4n < 28: self.w4_dma(1)
                if q >= 3 and pend: e(pend.pop(0))
            if J >= 1: pend += horner(J - 1) if J >= 4 else []
        self.w4_dma(28 - self.w4n)
        rest = [horner(J) for J in (0, 1, 2, 15)]
        for p in pend: e(p)
        for k in range(3):
            for h in rest: e(h[k])
        e(f'''v_lshlrev_b32 v1, 2, {v(vLN)}
        s_mul_i32 s3, s64, {YB1 - YB0}
        s_lshl_b32 s63, s65, 8
        s_add_u32 s3, s3, s63
        s_add_u32 s3, s3, {YB0}
        v_add_u32 v1, s3, v1
        s_mul_i32 s3, s64, 528
        s_lshl_b32 s63, s65, 4
        s_add_u32 s3, s3, s63
        s_add_u32 s3, s3, {CARR + 16}
        v_mov_b32 v2, s3
        s_barrier''')
        for J in range(16): e(f'ds_write_b32 v1, {v(ACC+4*J)} offset:{512*J}')
        e('s_mov_b32 exec_lo, 0\ns_mov_b32 exec_hi, 0x80000000')
        for J in range(16): e(f'ds_write_b128 v2, {v(ACC+4*J,4)} offset:{32*J}')
        e(f'''s_mov_b64 exec, -1
        v_lshlrev_b32 {v(DV)}, 16, {v(DV)}
        v_lshlrev_b32 v1, 5, {v(vLN)}
        s_mul_i32 s3, s64, {YB1 - YB0}
        s_lshl_b32 s63, s65, 12
        s_add_u32 s3, s3, s63
        s_add_u32 s3, s3, {YB0}
        v_add_u32 v1, s3, v1
        v_lshlrev_b32 v3, 4, {v(vLN)}
        s_mul_i32 s3, s64, 4352
        s_lshl_b32 s63, s65, 11
        s_add_u32 s3, s3, s63
        s_add_u32 s3, s3, {UB + 256}
        v_add_u32 v2, s3, v3
        v_lshrrev_b32 v4, 3, {v(vLN)}
        v_lshlrev_b32 v4, 4, v4
        s_lshl_b32 s63, s65, 8
        v_add_u32 v4, s63, v4
        v_add_u32 v5, 128, v4
        v_and_b32 v6, 7, v0
        v_cmp_eq_u32 vcc, 0, v6
        v_cndmask_b32 v4, 0, v4, vcc
        v_cndmask_b32 v5, 0, v5, vcc
        s_mul_i32 s3, s64, 528
        s_add_u32 s3, s3, {CARR}
        v_add_u32 v4, s3, v4
        v_add_u32 v5, s3, v5
        s_lshl_b32 s63, s2, 13
        s_lshl_b32 s3, s{sW}, 11
        s_add_u32 s63, s63, s3
        s_add_u32 s63, s63, {WS_YT}
        s_waitcnt lgkmcnt(0)
        s_barrier''')
        Y, U, CR, UF = ACC, ACC + 16, ACC + 24, ACC + 32
        for i in range(2):
            e(f'ds_read_b128 {v(Y+8*i,4)}, v1 offset:{2048*i}\nds_read_b128 {v(Y+8*i+4,4)}, v1 offset:{2048*i+16}')
            e(f'ds_read_b128 {v(U+4*i,4)}, v2 offset:{1024*i}\nds_read_b128 {v(CR+4*i,4)}, {v(4+i)}')
        for i in range(2):
            for k in range(3): e(f'v_add_f32 {v(Y+8*i+k)}, {v(Y+8*i+k)}, {v(CR+4*i+1+k)}')
            for k in range(4): e(f'v_lshlrev_b32 {v(UF+2*k)}, 16, {v(U+4*i+k)}\nv_and_b32 {v(UF+2*k+1)}, 0xffff0000, {v(U+4*i+k)}')
            for k in range(8): e(f'v_fmac_f32 {v(Y+8*i+k)}, {v(UF+k)}, {v(DV)}')
            for k in range(4): e(f'v_cvt_pk_bf16_f32 {v(U+4*i+k)}, {v(Y+8*i+2*k)}, {v(Y+8*i+2*k+1)}')
            e(f'buffer_store_dwordx4 {v(U+4*i,4)}, v3, {srd(SWS)}, s63 offen offset:{1024*i} sc1', tag='st')
        self.signal(73, 'st')
        e('s_waitcnt vmcnt(0)')
        self.stamp()

    def phase4(self):
        e = self.e
        aW = self.aW4
        dK, dS, ACC, FX, FW, X1F = T + 4, T + 5, T + 8, T + 40, T + 72, T + 104
        e(f'''s_lshr_b32 s64, s{sW}, 1
        s_and_b32 s65, s{sW}, 1
        s_lshl_b32 s63, s{sTT}, 6
        s_lshl_b32 s3, s{sW}, 4
        s_add_u32 s63, s63, s3
        v_add_u32 v1, s63, {v(vJ)}
        v_lshlrev_b32 v2, 15, {v(vG)}
        v_lshl_add_u32 {v(dK)}, v1, 4, v2
        v_xor_b32 {v(dS)}, 256, {v(dK)}
        s_mul_i32 s63, s65, {28*131072}
        s_add_u32 s63, s63, {WS_H2}
        s_lshr_b32 s66, s{sTT}, 1
        s_lshl_b32 s66, s66, 7
        s_add_u32 s66, s66, {C3*128}''')
        for p in range(8): e(f'v_lshlrev_b32 {v(X1F+2*p)}, 16, {v(X1P+p)}\nv_and_b32 {v(X1F+2*p+1)}, 0xffff0000, {v(X1P+p)}')
        L = self.lab('p4w')
        e(f's_cmp_lg_u32 s{sW}, 0\ns_cbranch_scc1 {L}')
        self.poll(v(vZ), 1, 16, 's66')
        e.label(L)
        e('s_barrier')
        self.stamp()
        cnt = [0]
        def ldx(u):
            e(f'buffer_load_dwordx4 {v(FX+8*u,4)}, {v(dK)}, {srd(SWS)}, s63 offen sc1\nbuffer_load_dwordx4 {v(FX+8*u+4,4)}, {v(dS)}, {srd(SWS)}, s63 offen sc1')
            e('s_add_u32 s63, s63, 131072')
        def ldw(sg):
            slot = sg if sg < 16 else sg - 16
            if sg == 16:
                for t in range(4): e(f'v_subrev_u32 {v(aW+t)}, 65536, {v(aW+t)}')
            if sg == 24:
                for t in range(4): e(f'v_add_u32 {v(aW+t)}, 65536, {v(aW+t)}')
            return [f'ds_read_b64_tr_b16 {v(FW+16*(sg%2)+4*t+2*hh,2)}, {v(aW+t)} offset:{(slot%8)*8192+hh*512}' for t in range(4) for hh in range(2)]
        for u in range(4): ldx(u)
        for sg in range(28):
            u = sg % 4
            rds = ldw(sg + 1) if 11 <= sg < 27 else []
            for t in range(4):
                for sl in range(2):
                    w = a(16 * sg + 4 * t, 4) if sg < 12 else v(FW + 16 * (sg % 2) + 4 * t, 4)
                    c = v(ACC + 16 * sl + 4 * t, 4) if sg else '0'
                    e(f'{MF} {v(ACC+16*sl+4*t,4)}, {w}, {v(FX+8*u+4*sl,4)}, {c}')
                    if rds: e(rds.pop(0))
            if sg + 4 < 28: ldx(u)
            if sg == 12:
                e(f'''v_lshrrev_b32 v1, 3, {v(vLN)}
                v_and_b32 v2, 7, v0
                v_and_b32 v3, 6, v1
                v_xor_b32 v2, v2, v3
                v_lshlrev_b32 v1, 12, v1
                v_lshl_add_u32 v7, v2, 4, v1
                s_lshl_b32 s66, s{sNT}, 7
                s_add_u32 s66, s66, {CY*128}
                s_lshl_b32 s67, s{sNT}, 18
                s_lshl_b32 s3, s{sW}, 16
                s_add_u32 s67, s67, s3
                s_lshl_b32 s3, s{sTT}, 7
                s_add_u32 s67, s67, s3
                s_add_u32 s67, s67, {WS_YT}
                s_lshl_b32 s68, s{sW}, 11''')
                self.check_issue('s66')
            if sg == 18:
                self.check_verify(32, 's66')
                e(f's_add_u32 m0, s68, {YIN}\nbuffer_load_dwordx4 v7, {srd(SWS)}, s67 offen sc1 lds\ns_add_u32 s67, s67, 32768')
                e(f's_add_u32 m0, s68, {YIN + 1024}\nbuffer_load_dwordx4 v7, {srd(SWS)}, s67 offen sc1 lds')
        self.stamp()
        e(f'''v_lshlrev_b32 v1, 4, {v(vLN)}
        s_lshl_b32 s3, s{sW}, 12
        s_add_u32 s3, s3, {EXC}
        v_add_u32 v1, s3, v1
        v_xor_b32 v2, 4096, v1''')
        for t in range(4): e(f'ds_write_b128 v1, {v(ACC+16+4*t,4)} offset:{1024*t}')
        e(f'''v_lshl_add_u32 v3, {v(vG)}, 2, {v(vR)}
        v_and_b32 v4, 6, v3
        v_lshrrev_b32 v5, 1, {v(vCQ)}
        s_lshl_b32 s3, s{sW}, 1
        v_add_u32 v5, s3, v5
        v_xor_b32 v4, v4, v5
        v_lshlrev_b32 v4, 4, v4
        v_and_b32 v5, 1, {v(vCQ)}
        v_lshl_or_b32 v4, v5, 3, v4
        v_lshl_add_u32 v3, v3, 7, v4
        v_add_u32 v3, {YIN}, v3
        s_waitcnt vmcnt(0) lgkmcnt(0)
        s_barrier''')
        YR, YF, O, E = FW, FX, ACC, FX + 16
        for t in range(4): e(f'ds_read_b128 {v(ACC+16+4*t,4)}, v2 offset:{1024*t}')
        for t in range(4): e(f'ds_read_b64_tr_b16 {v(YR+2*t,2)}, v3 offset:{2048*t}')
        e(f'v_mov_b32 v4, {fbits(-1.4426950408889634)}\nv_mov_b32 v5, v4\nv_mov_b32 v6, 1.0\nv_mov_b32 v7, 1.0')
        for p in range(8): e(f'v_pk_add_f32 {v(O+2*p,2)}, {v(O+2*p,2)}, {v(X1F+2*p,2)}')
        for p in range(8): e(f'v_pk_add_f32 {v(O+2*p,2)}, {v(O+2*p,2)}, {v(ACC+16+2*p,2)}')
        for p in range(8): e(f'v_pk_mul_f32 {v(E+2*p,2)}, {v(O+2*p,2)}, v[4:5]')
        for i in range(16): e(f'v_exp_f32 {v(E+i)}, {v(E+i)}')
        for p in range(8): e(f'v_lshlrev_b32 {v(YF+2*p)}, 16, {v(YR+p)}\nv_and_b32 {v(YF+2*p+1)}, 0xffff0000, {v(YR+p)}')
        for p in range(8): e(f'v_pk_add_f32 {v(E+2*p,2)}, {v(E+2*p,2)}, v[6:7]')
        for i in range(16): e(f'v_rcp_f32 {v(E+i)}, {v(E+i)}')
        for p in range(8): e(f'v_pk_mul_f32 {v(YF+2*p,2)}, {v(YF+2*p,2)}, {v(XN+2*p,2)}')
        for p in range(8): e(f'v_pk_mul_f32 {v(O+2*p,2)}, {v(O+2*p,2)}, {v(E+2*p,2)}')
        for p in range(8): e(f'v_pk_fma_f32 {v(O+2*p,2)}, {v(O+2*p,2)}, {v(YF+2*p,2)}, {v(XF+2*p,2)}')
        for p in range(8): e(f'v_cvt_pk_bf16_f32 {v(YR+p)}, {v(O+2*p)}, {v(O+2*p+1)}')
        e(f'''v_lshrrev_b32 v1, 1, {v(vG)}
        v_and_b32 v2, 7, {v(vJ)}
        v_xor_b32 v1, v1, v2
        v_lshlrev_b32 v1, 4, v1
        v_and_b32 v2, 1, {v(vG)}
        v_lshl_or_b32 v1, v2, 3, v1
        v_lshl_add_u32 v1, {v(vJ)}, 7, v1
        s_lshl_b32 s3, s{sW}, 11
        s_add_u32 s3, s3, {OST}
        v_add_u32 v1, s3, v1
        v_lshrrev_b32 v3, 3, {v(vLN)}
        v_and_b32 v4, 7, v0
        v_xor_b32 v5, v3, v4
        v_lshlrev_b32 v5, 4, v5
        v_lshl_add_u32 v5, v3, 7, v5
        v_add_u32 v5, s3, v5
        v_lshlrev_b32 v3, 10, v3
        v_lshl_add_u32 v3, v4, 4, v3
        s_lshl_b32 s63, s{sTT}, 16
        s_lshl_b32 s3, s{sW}, 14
        s_add_u32 s63, s63, s3
        s_lshl_b32 s3, s{sNT}, 7
        s_add_u32 s63, s63, s3
        s_add_u32 s64, s63, 8192''')
        for t in range(4): e(f'v_xor_b32 v2, {32*t}, v1\nds_write_b64 v2, {v(YR+2*t,2)}')
        e('s_waitcnt lgkmcnt(0)')
        e(f'ds_read_b128 {v(E,4)}, v5\nds_read_b128 {v(E+4,4)}, v5 offset:1024')
        e(f'buffer_store_dwordx4 {v(E,4)}, v3, {srd(SO)}, s63 offen\nbuffer_store_dwordx4 {v(E+4,4)}, v3, {srd(SO)}, s64 offen')
        self.stamp()

    def finish(self):
        e = self.e
        if self.prof:
            e(f's_waitcnt vmcnt(0)')
            self.stamp()
            e(f's_lshl_b32 s3, s2, 2\ns_add_u32 s3, s3, s{sW}\ns_lshl_b32 s3, s3, 7\ns_add_u32 s3, s3, {WS_PROF}\ns_mov_b64 exec, 1')
            for i in range(self.nst): e(f'v_mov_b32 v1, s{80+i}\nbuffer_store_dword v1, {v(vZ)}, {srd(SWS)}, s3 offen offset:{4*i}')
        if self.dbgtime:
            e(f's_waitcnt vmcnt(0)\ns_memrealtime s[76:77]\ns_waitcnt lgkmcnt(0)\ns_not_b32 s79, s78\ns_mov_b64 exec, 1')
            e(f'v_mov_b32 v1, s79\nv_mov_b32 v2, s76\nv_mov_b32 v3, s78\nbuffer_atomic_umax v1, {v(vZ)}, {srd(SDB)}, 0 offen offset:128 sc1')
            e(f'buffer_atomic_umax v2, {v(vZ)}, {srd(SDB)}, 0 offen offset:132 sc1\nbuffer_atomic_umax v3, {v(vZ)}, {srd(SDB)}, 0 offen offset:136 sc1')
            e(f's_waitcnt vmcnt(0)\nbuffer_load_dwordx3 v[4:6], {v(vZ)}, {srd(SDB)}, 0 offen offset:128 sc1')
            e(f'v_add_u32 v5, v5, v4\nv_add_u32 v6, v6, v4\nbuffer_atomic_umax v5, {v(vZ)}, {srd(SDB)}, 0 offen offset:8 sc1\nbuffer_atomic_umax v6, {v(vZ)}, {srd(SDB)}, 0 offen offset:12 sc1')
        e.label('L_end')
        e('s_endpgm')

    def build(self):
        steps = [self.setup, self.phase1, self.window1, self.phase2, self.window2, self.phase3, self.window3, self.phase4]
        for i, f in enumerate(steps):
            if i > self.stop: break
            self.e.c(f'==== {f.__name__}')
            f()
        self.finish()
        lines, nn = insert_nops(self.e.lines)
        for wg in (0, 1, 77, 255):
            bars = set()
            for w in range(4):
                errs, nb, cnt = trace_check(lines, wg, w, verbose=(wg == 77 and w == 1 and not self.prof))
                bars.add(nb)
                for x in errs[:10]: print(f'TRACE wg{wg} w{w}:', x, file=sys.stderr)
            assert len(bars) == 1, ('barrier counts differ', wg, bars)
        return lines, nn, cnt

HEADER = open('recurrent_scan__ssm_conv_h3__mixer_s_mlp__prompt.s.ref').read().split('; Override launch')[0] if __name__ == '__main__' else ''
def full(lines, header=''):
    return header + f"""; @launch grid=(256,1,1) block=(256,1,1) lds={LDS_BYTES}
.amdgcn_target "amdgcn-amd-amdhsa--gfx950"
.text
.globl {KN}
.p2align 8
.type {KN},@function
{KN}:
""" + '\n'.join(lines) + f"""
.section .rodata,"a"
.p2align 6
.amdhsa_kernel {KN}
  .amdhsa_next_free_vgpr 512
  .amdhsa_next_free_sgpr 102
  .amdhsa_accum_offset 256
  .amdhsa_group_segment_fixed_size 0
  .amdhsa_kernarg_size 112
  .amdhsa_user_sgpr_count 2
  .amdhsa_user_sgpr_kernarg_segment_ptr 1
  .amdhsa_system_sgpr_workgroup_id_x 1
.end_amdhsa_kernel
"""
if __name__ == '__main__':
    import argparse
    ap = argparse.ArgumentParser()
    ap.add_argument('-o', default='k.s'); ap.add_argument('--prof', type=int, default=0); ap.add_argument('--stop', type=int, default=99)
    ap.add_argument('--rot', type=int, default=0)
    ap.add_argument('--dbgtime', type=int, default=0)
    A = ap.parse_args()
    g = G(prof=A.prof, stop=A.stop, rot=A.rot, dbgtime=A.dbgtime)
    lines, nn, cnt = g.build()
    open(A.o, 'w').write(full(lines, HEADER))
    print('lines', len(lines), 'nops inserted', nn, cnt)
```

```python
import sys
from asmkit import Emit, insert_nops, trace_check

KN = 'recurrent_scan__ssm_conv_h3__mixer_s_mlp__prompt_kernel'
MB = 1 << 20
C1, C2, C3, CA, CY = 0, 32, 64, 96, 104
NCNT = 112
WS_H, WS_X1, WS_H2, WS_KVT, WS_YT, WS_ST, WS_PROF = 1 * MB, 3 * MB, 5 * MB, 13 * MB, 15 * MB, 17 * MB, 18 * MB
WS_SIZE = 20 * MB
R0, R1, R2 = 0, 65536, 131072
LDS_BYTES = 163840
KIN, VIN, STX, CSX = R2, R2 + 9216, R2 + 17408, R2 + 18432
HB, UB, YB0, YB1, CARR = R2, R2 + 8448, R2, R2 + 17152, R2 + 25344
YIN, EXC, OST = R2, R2 + 8192, R2 + 24576
SX, SK, SV, SW1, SW2, SW3, SW4, SSK, SO, SWS, SDB, SSH, SSD = 8, 12, 16, 20, 24, 28, 32, 36, 40, 44, 48, 52, 56
sW, sTT, sNT, sT3, sN3, sC = 4, 5, 6, 60, 61, 62
SPIN = 400000
GA = -2.0 * 0.7978845608028654 * 1.4426950408889634
GB = GA * 0.044715
import struct
def fbits(x): return '0x%08x' % struct.unpack('<I', struct.pack('<f', x))[0]
def srd(r): return f's[{r}:{r+3}]'
def v(n, c=1): return f'v{n}' if c == 1 else f'v[{n}:{n+c-1}]'
def a(n, c=1): return f'a{n}' if c == 1 else f'a[{n}:{n+c-1}]'
MF = 'v_mfma_f32_16x16x32_bf16'

XF, XN, X1P = 16, 32, 48
vJ, vG, vLN, vR, vCQ = 56, 57, 58, 59, 60
vONE, vZ = 61, 62
vWD = 63
T = 64
vP, vCK = 255, 254

class G:
    def __init__(self, prof=False, stop=99, rot=0, dbgtime=0):
        self.dbgtime = dbgtime
        self.e = Emit(); self.prof = prof; self.stop = stop; self.rot = rot; self.nst = 0; self.uid = 0; self.nmark = 0
    def stamp(self):
        self.e.c(f'@stamp{self.nmark}'); self.nmark += 1
        if self.prof:
            assert self.nst < 20
            r = 80 + self.nst
            self.e.auto = False
            op = 's_memtime' if self.prof == 2 and self.nst > 0 else 's_memrealtime'
            if self.prof == 2 and self.nst == 0: self.e('s_memtime s[78:79]')
            self.e(f'{op} s[76:77]\ns_waitcnt lgkmcnt(0)\ns_mov_b32 s{r}, s76')
            if self.prof == 2 and self.nst > 0: self.e(f's_sub_u32 s{r}, s{r}, s78')
            self.e.auto = True
            self.nst += 1
    def lab(self, n):
        self.uid += 1; return f'L_{n}_{self.uid}'

    def signal(self, sidx, tag):
        e = self.e; L = self.lab('sig')
        e.wait_tag(tag)
        e(f's_barrier\ns_cmp_lg_u32 s{sW}, 0\ns_cbranch_scc1 {L}')
        vm = list(e.vm)
        e(f's_mov_b64 exec, 1\nv_mov_b32 {v(vP)}, 1\nbuffer_atomic_add {v(vP)}, {v(vZ)}, {srd(SWS)}, s{sidx} offen sc1\ns_mov_b64 exec, -1')
        e.label(L)
        self.skew = True
    def poll(self, voff, mask, target_v, sbase):
        e = self.e; L = self.lab('poll'); X = self.lab('pollx')
        e(f's_mov_b64 exec, {mask}\ns_mov_b32 s3, 0')
        e.label(L)
        e.auto = False
        e(f's_add_u32 s3, s3, 1\ns_cmp_gt_u32 s3, {SPIN}\ns_cbranch_scc1 {X}')
        e(f'buffer_load_dword {v(vP)}, {voff}, {srd(SWS)}, {sbase} offen sc1\ns_waitcnt vmcnt(0)')
        e(f'v_cmp_gt_u32 vcc, {target_v}, {v(vP)}\ns_cbranch_vccnz {L} ; nottaken')
        e.label(X)
        e.auto = True
        e('s_waitcnt vmcnt(0)\ns_mov_b64 exec, -1')

    def check_issue(self, sbase):
        self.e(f'buffer_load_dword {v(vCK)}, {v(vZ)}, {srd(SWS)}, {sbase} offen sc1')
    def check_verify(self, target, sbase):
        e = self.e; X = self.lab('ck')
        e(f'v_readfirstlane_b32 s3, {v(vCK)}\ns_cmp_ge_u32 s3, {target}\ns_cbranch_scc1 {X} ; taken')
        sv = list(e.vm)
        self.poll(v(vZ), 1, target, sbase)
        e.label(X); e.vm = sv

    def gelu_pairs(self, pairs, tmp):
        e = self.e
        n = len(pairs)
        W = lambda i: tmp + 4 * i
        for i, (acc, cs, nm, A, B, ir, dst) in enumerate(pairs): e(f'v_pk_fma_f32 {v(W(i),2)}, {v(cs,2)}, {v(nm,2)}, {v(acc,2)}')
        for i, p in enumerate(pairs): e(f'v_pk_mul_f32 {v(W(i)+2,2)}, {v(W(i),2)}, {v(W(i),2)}')
        for i, p in enumerate(pairs): e(f'v_pk_fma_f32 {v(W(i)+2,2)}, {v(W(i)+2,2)}, {v(p[4],2)}, {v(p[3],2)}')
        for i, p in enumerate(pairs): e(f'v_pk_mul_f32 {v(W(i)+2,2)}, {v(W(i)+2,2)}, {v(W(i),2)}')
        for i, p in enumerate(pairs): e(f'v_exp_f32 {v(W(i)+2)}, {v(W(i)+2)}\nv_exp_f32 {v(W(i)+3)}, {v(W(i)+3)}')
        for i, p in enumerate(pairs): e(f'v_pk_fma_f32 {v(W(i)+2,2)}, {v(W(i)+2,2)}, {v(p[5],2)}, {v(p[5],2)}')
        for i, p in enumerate(pairs): e(f'v_rcp_f32 {v(W(i)+2)}, {v(W(i)+2)}\nv_rcp_f32 {v(W(i)+3)}, {v(W(i)+3)}')
        for i, p in enumerate(pairs): e(f'v_pk_mul_f32 {v(W(i),2)}, {v(W(i),2)}, {v(W(i)+2,2)}')
        for i, p in enumerate(pairs): e(f'v_cvt_pk_bf16_f32 {v(p[6])}, {v(W(i))}, {v(W(i)+1)}')
    def reduce_sq(self, S, Q, t):
        e = self.e
        e(f'v_permlane32_swap_b32 {v(S)}, {v(Q)}\nv_add_f32 {v(S)}, {v(S)}, {v(Q)}\nv_mov_b32 {v(t)}, {v(S)}')
        e(f'v_permlane16_swap_b32 {v(S)}, {v(t)}\nv_add_f32 {v(S)}, {v(S)}, {v(t)}')
    def token_consts(self, m, R, dst):
        e = self.e
        e(f'v_sub_f32 {v(dst)}, 0, {v(m)}\nv_mul_f32 {v(dst+2)}, {fbits(GA)}, {v(R)}\nv_mul_f32 {v(dst+4)}, {v(R)}, {v(R)}\nv_rcp_f32 {v(dst+6)}, {v(R)}')
        e(f'v_mov_b32 {v(dst+1)}, {v(dst)}\nv_mul_f32 {v(dst+4)}, {v(dst+4)}, {v(dst+2)}\nv_mov_b32 {v(dst+3)}, {v(dst+2)}\nv_mov_b32 {v(dst+7)}, {v(dst+6)}')
        e(f'v_mul_f32 {v(dst+4)}, {fbits(0.044715)}, {v(dst+4)}\nv_mov_b32 {v(dst+5)}, {v(dst+4)}')

    def setup(self):
        e = self.e
        e('s_cmp_ge_u32 s2, 256\ns_cbranch_scc1 L_end')
        if self.dbgtime: e('s_memrealtime s[78:79]')
        self.stamp()
        for r, off in ((SX, 0), (SW1, 56), (SWS, 104), (SDB, 96), (SK, 8), (SV, 16), (SSH, 24), (SSK, 32), (SSD, 40), (SW2, 64), (SW3, 72), (SW4, 80), (SO, 88)):
            e(f's_load_dwordx2 s[{r}:{r+1}], s[0:1], {off}')
        for r, sz in ((SX, 2 * MB), (SW1, MB // 2), (SWS, WS_SIZE), (SDB, 256), (SK, 2 * MB), (SV, 2 * MB), (SSH, 4096), (SSK, 2 * MB), (SSD, 1024),
                      (SW2, MB // 2), (SW3, 1792 * 1024), (SW4, 1792 * 1024), (SO, 2 * MB)):
            e(f's_mov_b32 s{r+2}, {sz}\ns_mov_b32 s{r+3}, 0x20000')
        e(f'''v_lshrrev_b32 v1, 6, v0
        v_and_b32 {v(vLN)}, 63, v0
        s_and_b32 s7, s2, 7
        v_readfirstlane_b32 s{sW}, v1 ; wave
        s_lshr_b32 s3, s2, 3
        s_lshr_b32 s{sTT}, s3, 3
        s_lshl_b32 s63, s7, 2
        s_add_u32 s{sTT}, s{sTT}, s63
        s_and_b32 s{sNT}, s3, 7
        s_lshr_b32 s{sT3}, s7, 1
        s_lshl_b32 s{sT3}, s{sT3}, 2
        s_lshr_b32 s63, s3, 3
        s_add_u32 s{sT3}, s{sT3}, s63
        s_and_b32 s{sN3}, s7, 1
        s_lshl_b32 s{sN3}, s{sN3}, 3
        s_add_u32 s{sN3}, s{sN3}, s{sNT}
        v_and_b32 {v(vJ)}, 15, v0
        v_lshrrev_b32 {v(vG)}, 4, {v(vLN)}
        v_bfe_u32 {v(vR)}, v0, 2, 2
        v_and_b32 {v(vCQ)}, 3, v0
        v_mov_b32 {v(vONE)}, 0x3f803f80
        v_mov_b32 {v(vZ)}, 0''')

    def phase1(self):
        e = self.e
        dX0, dX1, dW0, dW1 = T, T + 1, T + 2, T + 3
        aX = T + 4
        aW = T + 8
        ONES = T + 12
        ACC = T + 16
        CS = T + 32
        S, Q = T + 40, T + 41
        FX, FW = T + 44, T + 60
        TAP = T + 76
        FLG, DSK = T + 80, T + 81
        self.TAP, self.FLG = TAP, FLG
        e(f'''v_lshrrev_b32 v1, 3, {v(vLN)}
        v_and_b32 v2, 7, v0
        v_lshlrev_b32 v1, 10, v1
        v_xor_b32 v3, v2, {v(vG)}
        v_lshl_add_u32 {v(dX0)}, v3, 4, v1
        v_xor_b32 v3, 4, v3
        v_lshl_add_u32 {v(dX1)}, v3, 4, v1
        v_add_u32 {v(dX1)}, 8192, {v(dX1)}
        v_and_b32 v3, 1, {v(vG)}
        v_lshlrev_b32 v3, 1, v3
        v_xor_b32 v3, v3, v2
        v_lshl_add_u32 {v(dW0)}, v3, 4, v1
        v_xor_b32 v3, 4, v3
        v_lshl_add_u32 {v(dW1)}, v3, 4, v1
        s_lshl_b32 s64, s{sTT}, 16
        s_lshl_b32 s63, s{sW}, 14
        s_add_u32 s64, s64, s63
        s_lshl_b32 s65, s{sNT}, 7
        s_add_u32 s65, s65, s63
        s_lshl_b32 s66, s{sW}, 11''')
        e(f's_and_b32 s63, s{sW}, 1\ns_cmp_eq_u32 s63, 0\ns_cselect_b64 vcc, -1, 0\nv_cndmask_b32 {v(vWD)}, {v(dW1)}, {v(dW0)}, vcc')
        e(f'v_add_u32 {v(dW1)}, 8192, {v(dW1)}')
        if self.rot: e(f's_and_b32 s67, s{sTT}, 3\ns_lshl_b32 s67, s67, 1\ns_add_u32 s67, s67, s{sNT}\ns_and_b32 s67, s67, 7')
        else: e('s_mov_b32 s67, 0')
        def issue():
            e(f'''s_lshl_b32 s68, s67, 7
            s_add_u32 s68, s68, s64
            s_lshl_b32 s69, s67, 16
            s_add_u32 s69, s69, s65
            s_mov_b32 m0, s66
            buffer_load_dwordx4 {v(dX0)}, {srd(SX)}, s68 offen lds
            s_add_u32 m0, s66, 1024
            buffer_load_dwordx4 {v(dX1)}, {srd(SX)}, s68 offen lds
            s_add_u32 m0, s66, {R1}
            buffer_load_dwordx4 {v(dW0)}, {srd(SW1)}, s69 offen lds
            s_add_u32 m0, s66, {R1 + 1024}
            buffer_load_dwordx4 {v(dW1)}, {srd(SW1)}, s69 offen lds
            s_add_u32 s66, s66, 8192
            s_add_u32 s67, s67, 1
            s_and_b32 s67, s67, 7''')
        e('s_waitcnt lgkmcnt(0)')
        L = self.lab('init')
        e(f's_cmp_lg_u32 s2, 0\ns_cbranch_scc1 {L}')
        e(f'v_lshlrev_b32 v1, 7, v0\nv_cmp_gt_u32 vcc, {NCNT}, v0\nv_mov_b32 v2, 0x7fffffff\nv_cndmask_b32 v1, v2, v1, vcc')
        e(f'buffer_store_dword {v(vZ)}, v1, {srd(SWS)}, 0 offen sc1\ns_waitcnt vmcnt(0)\ns_barrier')
        e(f'v_mov_b32 v2, 1\nbuffer_store_dword v2, {v(vZ)}, {srd(SDB)}, 0 offen sc1\ns_waitcnt vmcnt(0)')
        e.label(L)
        e(f's_getpc_b64 s[70:71]')
        e.label('L_pc')
        e(f'''s_lshr_b32 s3, s2, 3
        s_lshl_b32 s3, s3, 2
        s_add_u32 s3, s3, s{sW}
        s_mul_i32 s3, s3, (L_end-L_pc+16383)/16384
        v_add_u32 v1, s3, {v(vLN)}
        v_min_u32 v1, (L_end-L_pc)/128, v1
        v_lshlrev_b32 v1, 7, v1
        s_mov_b32 exec_lo, (1<<((L_end-L_pc+16383)/16384))-1
        s_mov_b32 exec_hi, 0
        global_load_dword {v(DSK)}, v1, s[70:71]
        s_mov_b64 exec, -1''')
        issue(); issue()
        e(f'''s_lshr_b32 s63, s{sW}, 1
        s_lshl_b32 s63, s63, 12
        s_and_b32 s3, s{sW}, 1
        s_lshl_b32 s72, s3, 11
        v_lshrrev_b32 v1, 1, {v(vJ)}
        v_xor_b32 v1, v1, {v(vG)}
        v_lshlrev_b32 v1, 4, v1
        v_lshl_add_u32 v1, {v(vJ)}, 7, v1
        v_add_u32 v1, s63, v1
        v_add_u32 {v(aX)}, s72, v1
        s_xor_b32 s72, s72, 2048
        v_add_u32 {v(aX+2)}, s72, v1
        v_xor_b32 {v(aX+1)}, 64, {v(aX)}
        v_xor_b32 {v(aX+3)}, 64, {v(aX+2)}
        v_lshrrev_b32 v1, 1, {v(vR)}
        v_and_b32 v2, 1, {v(vG)}
        v_lshl_or_b32 v1, v2, 1, v1
        v_lshlrev_b32 v1, 1, v1
        v_lshrrev_b32 v2, 1, {v(vCQ)}
        v_xor_b32 v1, v1, v2
        v_lshlrev_b32 v1, 4, v1
        v_and_b32 v2, 1, {v(vCQ)}
        v_lshl_or_b32 v1, v2, 3, v1
        v_lshl_add_u32 v2, {v(vG)}, 3, {v(vR)}
        v_lshl_add_u32 v15, v2, 7, v1
        s_lshl_b32 s72, s3, 6
        v_xor_b32 {v(aW)}, s72, v15
        v_add_u32 {v(aW)}, {R1}, {v(aW)}
        v_xor_b32 {v(aW+1)}, 32, {v(aW)}''')
        self.vWstd = 15
        for i in range(4): e(f'v_mov_b32 {v(ONES+i)}, {v(vONE)}')
        for i in range(26): e(f'v_mov_b32 {v(ACC+i)}, 0')
        e(f's_mov_b32 s{sC}, 0')
        e.label('L_p1')
        e.auto = False
        e(f's_waitcnt vmcnt(4)\ns_barrier\ns_cmp_ge_u32 s{sC}, 6\ns_cbranch_scc1 L_p1alt')
        issue()
        e.label('L_p1c')
        for ks in range(2):
            for sl in range(2): e(f'ds_read_b128 {v(FX+8*ks+4*sl,4)}, {v(aX+2*sl+ks)}')
            for b in range(2):
                for hh in range(2): e(f'ds_read_b64_tr_b16 {v(FW+8*ks+4*b+2*hh,2)}, {v(aW+b)} offset:{(32*ks+4*hh)*128}')
        for ks in range(2):
            x0, x1, w0, w1 = FX + 8 * ks, FX + 8 * ks + 4, FW + 8 * ks, FW + 8 * ks + 4
            e(f's_waitcnt lgkmcnt({8 - 6*ks})')
            e(f'{MF} {v(ACC,4)}, {v(w0,4)}, {v(x0,4)}, {v(ACC,4)}')
            e(f'v_dot2_f32_bf16 {v(S)}, {v(x0)}, {v(vONE)}, {v(S)}\nv_dot2_f32_bf16 {v(Q)}, {v(x0)}, {v(x0)}, {v(Q)}')
            e(f'{MF} {v(ACC+8,4)}, {v(w0,4)}, {v(x1,4)}, {v(ACC+8,4)}')
            e(f'v_dot2_f32_bf16 {v(S)}, {v(x0+1)}, {v(vONE)}, {v(S)}\nv_dot2_f32_bf16 {v(Q)}, {v(x0+1)}, {v(x0+1)}, {v(Q)}')
            e(f'{MF} {v(CS,4)}, {v(w0,4)}, {v(ONES,4)}, {v(CS,4)}')
            e(f's_waitcnt lgkmcnt({6 - 6*ks})')
            e(f'{MF} {v(ACC+4,4)}, {v(w1,4)}, {v(x0,4)}, {v(ACC+4,4)}')
            e(f'v_dot2_f32_bf16 {v(S)}, {v(x0+2)}, {v(vONE)}, {v(S)}\nv_dot2_f32_bf16 {v(Q)}, {v(x0+2)}, {v(x0+2)}, {v(Q)}')
            e(f'{MF} {v(ACC+12,4)}, {v(w1,4)}, {v(x1,4)}, {v(ACC+12,4)}')
            e(f'v_dot2_f32_bf16 {v(S)}, {v(x0+3)}, {v(vONE)}, {v(S)}\nv_dot2_f32_bf16 {v(Q)}, {v(x0+3)}, {v(x0+3)}, {v(Q)}')
            e(f'{MF} {v(CS+4,4)}, {v(w1,4)}, {v(ONES,4)}, {v(CS+4,4)}')
        for r in (aX, aX + 1, aX + 2, aX + 3, aW, aW + 1): e(f'v_add_u32 {v(r)}, 8192, {v(r)}')
        e(f's_add_u32 s{sC}, s{sC}, 1\ns_cmp_lt_u32 s{sC}, 8\ns_cbranch_scc1 L_p1\ns_branch L_p1done')
        e.label('L_p1alt')
        e(f'''v_lshrrev_b32 v1, 3, {v(vLN)}
        v_and_b32 v2, 7, v0
        v_lshlrev_b32 v1, 10, v1
        v_lshl_add_u32 v1, v2, 4, v1
        s_lshl_b32 s68, s{sTT}, 16
        s_lshl_b32 s69, s{sNT}, 7
        s_add_u32 s68, s68, s69
        s_cmp_eq_u32 s{sC}, 7
        s_cbranch_scc1 L_p1alt2
        s_lshl_b32 s69, s{sW}, 14
        s_add_u32 s68, s68, s69
        s_lshl_b32 s63, s{sW}, 11
        s_lshl_b32 s3, s{sW}, 5''')
        for i in range(2):
            e(f's_add_u32 s72, s3, {16*(i+1)}\ns_and_b32 s72, s72, 0x70\nv_xor_b32 v2, s72, v1\ns_add_u32 m0, s63, {KIN + 1024*(i+1)}')
            e(f'buffer_load_dwordx4 v2, {srd(SK)}, s68 offen lds')
            e(f's_add_u32 s72, s3, {16*i}\nv_xor_b32 v2, s72, v1\ns_add_u32 m0, s63, {VIN + 1024*i}')
            e(f'buffer_load_dwordx4 v2, {srd(SV)}, s68 offen lds')
            if i == 0: e('s_add_u32 s68, s68, 8192')
        e('s_branch L_p1c')
        e.label('L_p1alt2')
        e(f'''s_cmp_eq_u32 s{sTT}, 0
        s_cselect_b32 s69, 0x7ff00000, 0
        s_cselect_b32 s72, 0, 8192
        s_sub_u32 s68, s68, s72
        v_add_u32 v1, s69, v1
        s_mov_b32 m0, {KIN}
        v_lshrrev_b32 v2, 3, {v(vLN)}
        buffer_load_dwordx4 v1, {srd(SK)}, s68 offen lds
        v_lshlrev_b32 v2, 4, v2
        s_lshl_b32 s68, s{sNT}, 9
        s_lshl_b32 s69, s{sW}, 7
        s_add_u32 s68, s68, s69
        buffer_load_dwordx4 {v(TAP,4)}, v2, {srd(SSH)}, s68 offen
        buffer_load_dword {v(FLG)}, {v(vZ)}, {srd(SDB)}, 0 offen sc1
        buffer_load_dword {v(DSK)}, {v(vZ)}, {srd(SDB)}, 0 offen sc1
        s_branch L_p1c''')
        e.label('L_p1done')
        e.vm = [(set(), 'kv'), ({('v', TAP + i) for i in range(4)}, None), ({('v', FLG)}, None), ({('v', DSK)}, None)]; e.lg = []
        e.auto = True
        self.stamp()
        t0 = FX
        self.reduce_sq(S, Q, t0)
        e(f'''v_mov_b32 {v(Q)}, {v(S)}
        v_permlane32_swap_b32 {v(S)}, {v(Q)}
        v_mul_f32 {v(S)}, {fbits(1/512)}, {v(S)}
        v_mul_f32 {v(t0)}, {v(S)}, {v(S)}
        v_mov_b32 {v(t0+1)}, {fbits(1/512)}
        v_fma_f32 {v(Q)}, {v(Q)}, {v(t0+1)}, -{v(t0)}
        v_max_f32 {v(Q)}, 0, {v(Q)}
        v_add_f32 {v(t0)}, {fbits(1e-5)}, {v(Q)}
        v_rsq_f32 {v(t0+2)}, {v(t0)}
        v_rcp_f32 {v(t0)}, {v(t0)}
        v_mov_b32 {v(t0+1)}, {fbits(1e-5)}
        v_fma_f32 {v(t0)}, {v(Q)}, {v(t0)}, {v(t0+1)}
        v_rsq_f32 {v(t0)}, {v(t0)}
        s_lshl_b32 s63, s{sW}, 7
        s_add_u32 s63, s63, {STX}
        v_lshlrev_b32 v2, 3, {v(vJ)}
        v_add_u32 v2, s63, v2
        v_mul_f32 {v(Q)}, {v(t0)}, {v(t0+2)}
        ds_write_b64 v2, {v(S,2)}''')
        R1v = t0 + 2
        e(f'''s_sub_u32 s63, s{sNT}, s67
        s_and_b32 s63, s63, 7
        s_lshl_b32 s63, s63, 13
        s_lshl_b32 s3, s{sW}, 11
        s_add_u32 s63, s63, s3
        v_lshrrev_b32 v3, 1, {v(vJ)}
        v_lshrrev_b32 v4, 1, {v(vG)}
        v_xor_b32 v3, v3, v4
        v_lshlrev_b32 v3, 4, v3
        v_and_b32 v4, 1, {v(vG)}
        v_lshl_or_b32 v3, v4, 3, v3
        v_lshl_add_u32 v3, {v(vJ)}, 7, v3
        v_add_u32 v3, s63, v3''')
        XR = FW
        for t in range(4):
            e(f'v_xor_b32 v4, {32*t}, v3\nds_read_b64 {v(XR+2*t,2)}, v4')
        e(f'v_xor_b32 v2, 128, v2\ns_waitcnt lgkmcnt(0)\ns_barrier')
        OT = t0 + 4
        e(f'ds_read_b64 {v(OT,2)}, v2')
        K0, K1 = t0 + 8, FW + 8
        self.token_consts(S, Q, K0)
        self.token_consts(OT, OT + 1, K1)
        PK = T + 84; TMP = T + 92
        e(f'''s_and_b32 s3, s{sW}, 1
        s_lshl_b32 s63, s{sNT}, 1
        s_add_u32 s63, s63, s3
        s_lshl_b32 s63, s63, 17
        s_lshl_b32 s3, s{sTT}, 10
        s_add_u32 s63, s63, s3
        s_add_u32 s63, s63, {WS_H}
        s_lshl_b32 s3, s{sW}, 8
        v_lshlrev_b32 v1, 15, {v(vG)}
        v_lshl_add_u32 v1, {v(vJ)}, 4, v1
        v_add_u32 v5, s3, v1
        v_xor_b32 v6, 256, v5''')
        for sl, K in ((0, K0), (1, K1)):
            self.gelu_pairs([(ACC + 8 * sl + 2 * p, CS + 2 * p, K, K + 2, K + 4, K + 6, PK + 4 * sl + p) for p in range(4)], TMP)
            e(f'buffer_store_dwordx4 {v(PK+4*sl,4)}, {v(5+sl)}, {srd(SWS)}, s63 offen sc1', tag='st')
        self.p1 = (XR, S, R1v)

    def w2_dma(self, lo, hi):
        e = self.e
        for i in range(lo, hi):
            e(f's_add_u32 m0, s73, {R1 + 4096*i}\nbuffer_load_dwordx4 v7, {srd(SW2)}, s74 offen lds\ns_add_u32 s74, s74, 32768', tag='w2')
    def w3_dma(self, step_lo, n):
        e = self.e
        for q in range(n):
            st = step_lo + 4 * q
            e(f's_add_u32 s63, s{sW}, {st}\ns_mul_i32 s72, s63, {32*3584}\ns_mul_i32 s3, s{sN3}, 224\ns_add_u32 s72, s72, s3\ns_mul_i32 s63, s{sW}, 7168')
            base = (R0 if st < 8 else R1) + (st % 8) * 7168
            for i in range(7):
                e(f's_add_u32 m0, s63, {base + 1024*i}\nbuffer_load_dwordx4 {v(8+i)}, {srd(SW3)}, s72 offen lds', tag='w3')

    def window1(self):
        e = self.e
        XR, S, R1v = self.p1
        e(f'''v_lshrrev_b32 v1, 3, {v(vLN)}
        v_and_b32 v2, 7, v0
        v_and_b32 v3, 6, v1
        v_xor_b32 v2, v2, v3
        v_lshlrev_b32 v1, 10, v1
        v_lshl_add_u32 v7, v2, 4, v1
        s_lshl_b32 s73, s{sW}, 10
        s_lshl_b32 s74, s{sW}, 13
        s_lshl_b32 s3, s{sNT}, 7
        s_add_u32 s74, s74, s3''')
        self.w2_dma(0, 6)
        L = self.lab('ini'); X = self.lab('inix')
        e(f'v_readfirstlane_b32 s3, {v(self.FLG)}\ns_cmp_lg_u32 s3, 0\ns_cbranch_scc1 {X} ; taken')
        sv = list(e.vm)
        e('s_mov_b32 s63, 0')
        e.label(L); e.auto = False
        e(f's_add_u32 s63, s63, 1\ns_cmp_gt_u32 s63, {SPIN}\ns_cbranch_scc1 {X}')
        e(f'buffer_load_dword v1, {v(vZ)}, {srd(SDB)}, 0 offen sc1\ns_waitcnt vmcnt(0)\nv_readfirstlane_b32 s3, v1\ns_cmp_eq_u32 s3, 0\ns_cbranch_scc1 {L} ; nottaken')
        e.label(X); e.auto = True; e.vm = sv
        e(f's_lshl_b32 s75, s{sTT}, 7\ns_add_u32 s75, s75, {C1*128}')
        self.signal(75, 'st')
        self.stamp()
        e.vm = [(set(), 'w2')] * 7
        self.w2_dma(6, 16)
        for i in range(8):
            e(f'v_lshlrev_b32 {v(XF+2*i)}, 16, {v(XR+i)}\nv_and_b32 {v(XF+2*i+1)}, 0xffff0000, {v(XR+i)}')
        for i in range(16): e(f'v_sub_f32 {v(XN+i)}, {v(XF+i)}, {v(S)}')
        for i in range(16): e(f'v_mul_f32 {v(XN+i)}, {v(XN+i)}, {v(R1v)}')
        TAP = self.TAP
        KR, VR, TP, KF, VF, AC, PK = T, T + 12, T + 20, T + 28, T + 84, T + 100, T + 116
        e(f'''v_and_b32 v1, 7, v0
        v_lshrrev_b32 v2, 3, {v(vLN)}
        v_lshrrev_b32 v3, 2, v2
        s_lshl_b32 s3, s{sW}, 1
        v_add_u32 v3, s3, v3
        v_and_b32 v2, 3, v2
        v_lshlrev_b32 v2, 2, v2
        v_lshl_add_u32 v2, v1, 10, v2
        v_xor_b32 v4, v3, v1
        v_lshl_add_u32 v4, v4, 4, v2
        v_add_u32 v5, 1, v1
        v_and_b32 v5, 7, v5
        v_xor_b32 v5, v3, v5
        v_lshl_add_u32 v5, v5, 4, v2
        v_add_u32 v4, {R2}, v4
        v_add_u32 v5, {R2}, v5''')
        for i in range(11): e(f'ds_read_b32 {v(KR+i)}, {v(4 if i < 3 else 5)} offset:{KIN - R2 + (5+i)*128}')
        for i in range(8): e(f'ds_read_b32 {v(VR+i)}, v4 offset:{VIN - R2 + i*128}')
        for j in range(4):
            for ch in range(2):
                src = TAP + 2 * ch + (j >> 1)
                e(f'v_and_b32 {v(TP+2*j+ch)}, 0xffff0000, {v(src)}' if j & 1 else f'v_lshlrev_b32 {v(TP+2*j+ch)}, 16, {v(src)}')
        for i in range(11): e(f'v_lshlrev_b32 {v(KF+2*i)}, 16, {v(KR+i)}\nv_and_b32 {v(KF+2*i+1)}, 0xffff0000, {v(KR+i)}')
        for i in range(8): e(f'v_lshlrev_b32 {v(VF+2*i)}, 16, {v(VR+i)}\nv_and_b32 {v(VF+2*i+1)}, 0xffff0000, {v(VR+i)}')
        for t in range(8): e(f'v_pk_mul_f32 {v(AC+2*t,2)}, {v(KF+2*t,2)}, {v(TP+6,2)}')
        for j in (2, 1, 0):
            for t in range(8): e(f'v_pk_fma_f32 {v(AC+2*t,2)}, {v(KF+2*(t+3-j),2)}, {v(TP+2*j,2)}, {v(AC+2*t,2)}')
        for t in range(8): e(f'v_pk_mul_f32 {v(AC+2*t,2)}, {v(AC+2*t,2)}, {v(VF+2*t,2)}')
        for ch in range(2):
            for p in range(4): e(f'v_cvt_pk_bf16_f32 {v(PK+4*ch+p)}, {v(AC+4*p+ch)}, {v(AC+4*p+2+ch)}')
        e(f'''v_lshrrev_b32 v2, 3, {v(vLN)}
        v_lshlrev_b32 v2, 13, v2
        v_lshl_add_u32 v2, v1, 4, v2
        v_add_u32 v3, 4096, v2
        s_lshl_b32 s63, s{sNT}, 18
        s_lshl_b32 s3, s{sW}, 16
        s_add_u32 s63, s63, s3
        s_lshl_b32 s3, s{sTT}, 7
        s_add_u32 s63, s63, s3
        s_add_u32 s63, s63, {WS_KVT}''')
        e(f'buffer_store_dwordx4 {v(PK,4)}, v2, {srd(SWS)}, s63 offen sc1', tag='st')
        e(f'buffer_store_dwordx4 {v(PK+4,4)}, v3, {srd(SWS)}, s63 offen sc1', tag='st')
        for i in range(7):
            e(f'v_add_u32 v1, {64*i}, {v(vLN)}\nv_mul_u32_u24 v2, 4682, v1\nv_lshrrev_b32 v2, 16, v2\nv_mul_u32_u24 v3, 14, v2\nv_sub_u32 v3, v1, v3')
            e(f'v_mul_u32_u24 v2, 3584, v2\nv_lshl_add_u32 {v(8+i)}, v3, 4, v2')
        e(f's_lshl_b32 s75, s{sNT}, 7\ns_add_u32 s75, s75, {CA*128}')
        self.signal(75, 'st')
        e.vm = [(set(), None)]
        self.w3_dma(0, 1)
        self.stamp()

    def phase2(self):
        e = self.e
        aW, dH, ACC, FH, FW = T, T + 4, T + 8, T + 24, T + 56
        e(f'''v_lshl_add_u32 v1, {v(vG)}, 2, {v(vR)}
        v_and_b32 v2, 6, v1
        v_lshrrev_b32 v3, 1, {v(vCQ)}
        v_xor_b32 v2, v2, v3
        v_lshlrev_b32 v2, 4, v2
        v_and_b32 v3, 1, {v(vCQ)}
        v_lshl_or_b32 v2, v3, 3, v2
        v_lshl_add_u32 v1, v1, 7, v2
        v_add_u32 {v(aW)}, {R1}, v1
        s_lshl_b32 s63, s{sTT}, 6
        s_lshl_b32 s3, s{sW}, 4
        s_add_u32 s63, s63, s3
        v_add_u32 v1, s63, {v(vJ)}
        v_lshlrev_b32 v2, 15, {v(vG)}
        v_mov_b32 v4, 0x7ff00000
        s_movk_i32 s3, 2048''')
        for t in range(1, 4): e(f'v_xor_b32 {v(aW+t)}, {32*t}, {v(aW)}')
        for g, d in enumerate((-1, 1, -2, 2)):
            e(f'v_add_u32 v3, {d}, v1\nv_cmp_gt_u32 vcc, s3, v3\nv_lshl_add_u32 v3, v3, 4, v2\nv_cndmask_b32 {v(dH+g)}, v4, v3, vcc')
        e(f'''v_add_u32 v2, s{sTT}, {v(vLN)}
        v_subrev_u32 v2, 1, v2
        v_max_i32 v2, 0, v2
        v_min_i32 v2, 31, v2
        v_lshlrev_b32 v2, 7, v2''')
        e.wait_tag('w2')
        L = self.lab('p2w')
        e(f's_cmp_lg_u32 s{sW}, 0\ns_cbranch_scc1 {L}')
        self.poll('v2', 7, 8, str(C1 * 128) if C1 else '0')
        e.label(L)
        e('s_barrier')
        e.vm = [(set(), 'w3')] * 7
        self.stamp()
        e(f's_mov_b32 s63, {WS_H}')
        def ldh(s): e(f'buffer_load_dwordx4 {v(FH+4*(s%8),4)}, {v(dH+s//4)}, {srd(SWS)}, s63 offen sc1\ns_add_u32 s63, s63, 131072')
        def ldw(s):
            for t in range(4):
                for hh in range(2): e(f'ds_read_b64_tr_b16 {v(FW+16*(s%2)+4*t+2*hh,2)}, {v(aW+t)} offset:{(32*s+16*hh)*128}')
        for s in range(8): ldh(s)
        ldw(0)
        for s in range(16):
            if s < 15: ldw(s + 1)
            for t in range(4):
                c = v(ACC + 4 * t, 4) if s else '0'
                e(f'{MF} {v(ACC+4*t,4)}, {v(FW+16*(s%2)+4*t,4)}, {v(FH+4*(s%8),4)}, {c}')
            if s < 8: ldh(s + 8)
        self.stamp()
        for p in range(8): e(f'v_pk_add_f32 {v(ACC+2*p,2)}, {v(ACC+2*p,2)}, {v(XN+2*p,2)}')
        for p in range(8): e(f'v_cvt_pk_bf16_f32 {v(X1P+p)}, {v(ACC+2*p)}, {v(ACC+2*p+1)}')
        e(f'''s_lshl_b32 s63, s{sNT}, 18
        s_lshl_b32 s3, s{sTT}, 10
        s_add_u32 s63, s63, s3
        s_lshl_b32 s3, s{sW}, 8
        s_add_u32 s63, s63, s3
        s_add_u32 s63, s63, {WS_X1}
        s_add_u32 s64, s63, 131072
        v_lshlrev_b32 v1, 15, {v(vG)}
        v_lshl_add_u32 v1, {v(vJ)}, 4, v1''')
        e(f'buffer_store_dwordx4 {v(X1P,4)}, v1, {srd(SWS)}, s63 offen sc1', tag='st')
        e(f'buffer_store_dwordx4 {v(X1P+4,4)}, v1, {srd(SWS)}, s64 offen sc1', tag='st')
        S, Q = FH, FH + 1
        e(f'v_dot2_f32_bf16 {v(S)}, {v(X1P)}, {v(vONE)}, 0\nv_dot2_f32_bf16 {v(Q)}, {v(X1P)}, {v(X1P)}, 0')
        for p in range(1, 8): e(f'v_dot2_f32_bf16 {v(S)}, {v(X1P+p)}, {v(vONE)}, {v(S)}\nv_dot2_f32_bf16 {v(Q)}, {v(X1P+p)}, {v(X1P+p)}, {v(Q)}')
        e('s_nop 2')
        self.reduce_sq(S, Q, FH + 2)
        e(f'''s_lshl_b32 s63, s{sNT}, 14
        s_lshl_b32 s3, s{sTT}, 9
        s_add_u32 s63, s63, s3
        s_lshl_b32 s3, s{sW}, 7
        s_add_u32 s63, s63, s3
        s_add_u32 s63, s63, {WS_ST}
        v_lshrrev_b32 v2, 1, {v(vG)}
        v_lshlrev_b32 v2, 6, v2
        v_lshl_add_u32 v2, {v(vJ)}, 2, v2
        s_mov_b32 exec_lo, 0xffff
        s_mov_b32 exec_hi, 0xffff''')
        e(f'buffer_store_dword {v(S)}, v2, {srd(SWS)}, s63 offen sc1', tag='st')
        e(f's_mov_b64 exec, -1\ns_lshl_b32 s75, s{sTT}, 7\ns_add_u32 s75, s75, {C2*128}')
        self.signal(75, 'st')
        self.stamp()

    def window2(self):
        e = self.e
        e.vm = [(set(), None)]
        self.w3_dma(4, 3)
        aW = T
        self.aW3 = aW
        e(f'''v_lshl_add_u32 v1, {v(vG)}, 2, {v(vR)}
        v_mul_u32_u24 v1, 224, v1
        v_lshl_add_u32 {v(aW)}, {v(vCQ)}, 3, v1
        v_add_u32 {v(aW+1)}, {R1}, {v(aW)}''')
        ONES, CA_, F = T + 4, T + 8, T + 16
        for i in range(4): e(f'v_mov_b32 {v(ONES+i)}, {v(vONE)}')
        e(f'''s_lshl_b32 s3, s{sW}, 5
        s_add_u32 s63, s3, 128
        s_min_u32 s63, s63, 192
        v_add_u32 v1, s3, {v(aW)}
        v_add_u32 v2, s63, {v(aW)}
        v_add_u32 v3, {R1}, v1
        v_add_u32 v4, {R1}, v2
        s_waitcnt vmcnt(0)
        s_barrier''')
        def rd(s):
            for t in range(2):
                for hh in range(2): e(f'ds_read_b64_tr_b16 {v(F+8*(s%4)+4*t+2*hh,2)}, {v(1+t+(2 if s >= 8 else 0))} offset:{(s%8)*7168+hh*3584}')
        for s in range(3): rd(s)
        for s in range(16):
            if s + 3 < 16: rd(s + 3)
            for t in range(2):
                c = v(CA_ + 4 * t, 4) if s else '0'
                e(f'{MF} {v(CA_+4*t,4)}, {v(F+8*(s%4)+4*t,4)}, {v(ONES,4)}, {c}')
        e(f'''v_lshlrev_b32 v1, 4, {v(vG)}
        s_lshl_b32 s3, s3, 1
        s_lshl_b32 s63, s63, 1
        v_add_u32 v2, s63, v1
        v_add_u32 v1, s3, v1
        v_add_u32 v1, {CSX}, v1
        v_add_u32 v2, {CSX}, v2
        s_mov_b32 exec_lo, 0x00010001
        s_mov_b32 exec_hi, 0x00010001
        ds_write_b128 v1, {v(CA_,4)}
        ds_write_b128 v2, {v(CA_+4,4)}
        s_mov_b64 exec, -1
        v_lshlrev_b32 v1, 4, {v(vG)}
        v_add_u32 v1, {CSX}, v1
        s_waitcnt lgkmcnt(0)
        s_barrier''')
        self.CS3 = T + 4
        for t in range(7): e(f'ds_read_b128 {v(self.CS3+4*t,4)}, v1 offset:{64*t}')
        self.stamp()

    def phase3(self):
        e = self.e
        aW = self.aW3; CS = self.CS3
        dX, aC, aN = T + 2, T + 32, T + 33
        ACC, FX, FW, ST = T + 36, T + 92, T + 124, T + 180
        e(f'''s_lshl_b32 s63, s{sT3}, 7
        s_lshl_b32 s3, s{sW}, 5
        s_add_u32 s63, s63, s3
        v_add_u32 v1, s63, {v(vJ)}
        v_lshlrev_b32 v2, 15, {v(vG)}
        v_lshl_add_u32 {v(dX)}, v1, 4, v2
        s_lshl_b32 s64, s63, 3
        s_add_u32 s64, s64, {WS_ST}
        v_lshlrev_b32 v2, 15, {v(vG)}
        v_lshl_add_u32 v2, {v(vJ)}, 2, v2
        v_add_u32 v3, 16384, v2
        s_lshl_b32 s65, s{sT3}, 1
        s_lshr_b32 s3, s{sW}, 1
        s_add_u32 s65, s65, s3
        s_lshl_b32 s65, s65, 7
        s_add_u32 s65, s65, {C2*128}
        v_mov_b32 {v(aC)}, {v(aW)}''')
        for i in range(56): e(f'v_mov_b32 {v(ACC+i)}, 0')
        def ldw(buf, reg, off):
            for t in range(7):
                for hh in range(2): e(f'ds_read_b64_tr_b16 {v(FW+28*buf+4*t+2*hh,2)}, {v(reg)} offset:{off+hh*3584+32*t}')
        ldw(0, aC, 0)
        self.poll(v(vZ), 1, 8, 's65')
        self.stamp()
        for a_ in range(2):
            for h in range(2):
                for q in range(2): e(f'buffer_load_dword {v(ST+4*a_+2*h+q)}, {v(2+h)}, {srd(SWS)}, s64 offen offset:{128*a_+64*q} sc1')
        e(f's_mov_b32 s63, {WS_X1}')
        def ldx(u):
            for a_ in range(2): e(f'buffer_load_dwordx4 {v(FX+8*u+4*a_,4)}, {v(dX)}, {srd(SWS)}, s63 offen offset:{256*a_} sc1')
            e('s_add_u32 s63, s63, 131072')
        for u in range(4): ldx(u)
        e(f's_mov_b32 s{sC}, 0\ns_mov_b32 s66, 28672')
        e.label('L_p3')
        e.auto = False
        e(f's_cmp_eq_u32 s{sC}, 1\ns_cselect_b32 s3, {R1 - 28672}, s66\nv_add_u32 {v(aN)}, s3, {v(aC)}')
        for u in range(4):
            e('s_waitcnt vmcnt(6) lgkmcnt(0)')
            k = 0
            rds = [(t, hh) for t in range(7) for hh in range(2)]
            for t in range(7):
                for a_ in range(2):
                    e(f'{MF} {v(ACC+28*a_+4*t,4)}, {v(FW+28*(u%2)+4*t,4)}, {v(FX+8*u+4*a_,4)}, {v(ACC+28*a_+4*t,4)}')
                    tt_, hh = rds[k]; k += 1
                    reg, off = (aC, (u + 1) * 7168) if u < 3 else (aN, 0)
                    e(f'ds_read_b64_tr_b16 {v(FW+28*((u+1)%2)+4*tt_+2*hh,2)}, {v(reg)} offset:{off+hh*3584+32*tt_}')
            ldx(u)
        e(f'v_mov_b32 {v(aC)}, {v(aN)}\ns_add_u32 s{sC}, s{sC}, 1\ns_cmp_lt_u32 s{sC}, 4')
        e(f's_cbranch_scc0 L_p3done\ns_cmp_lt_u32 s{sC}, 3\ns_cbranch_scc1 L_p3\ns_mov_b32 s63, {WS_SIZE}\ns_branch L_p3')
        e.label('L_p3done')
        e('s_waitcnt vmcnt(0) lgkmcnt(0)')
        e.auto = True
        self.stamp()
        e(f's_lshr_b32 s3, s2, 5\ns_lshl_b32 s3, s3, 7\ns_add_u32 s72, s3, {CA*128}\ns_add_u32 s73, s3, {CY*128}')
        self.check_issue('s72')
        e('s_barrier')
        e(f'''s_lshl_b32 s66, s{sW}, 13
        s_lshl_b32 s3, s{sNT}, 7
        s_add_u32 s66, s66, s3
        s_add_u32 s67, s66, {896*1024}
        s_lshl_b32 s68, s{sW}, 10''')
        K = [FX, FX + 8]
        for a_ in range(2):
            s_, q_ = ST + 4 * a_, ST + 4 * a_ + 1
            e(f'v_add_f32 {v(s_)}, {v(s_)}, {v(s_+2)}\nv_add_f32 {v(q_)}, {v(q_)}, {v(q_+2)}')
            self.reduce_sq(s_, q_, s_ + 2)
            e(f'''v_mov_b32 {v(q_)}, {v(s_)}
            v_permlane32_swap_b32 {v(s_)}, {v(q_)}
            v_mul_f32 {v(s_)}, {fbits(1/512)}, {v(s_)}
            v_mul_f32 {v(s_+2)}, {v(s_)}, {v(s_)}
            v_mov_b32 {v(s_+3)}, {fbits(1/512)}
            v_fma_f32 {v(q_)}, {v(q_)}, {v(s_+3)}, -{v(s_+2)}
            v_max_f32 {v(q_)}, 0, {v(q_)}
            v_add_f32 {v(q_)}, {fbits(1e-5)}, {v(q_)}
            v_rsq_f32 {v(q_)}, {v(q_)}''')
            self.token_consts(s_, q_, K[a_])
        e(f'''s_mul_i32 s63, s{sN3}, {14*32768}
        s_lshl_b32 s3, s{sT3}, 11
        s_add_u32 s63, s63, s3
        s_lshl_b32 s3, s{sW}, 9
        s_add_u32 s63, s63, s3
        s_add_u32 s63, s63, {WS_H2}
        v_lshrrev_b32 v1, 1, {v(vG)}
        v_lshlrev_b32 v1, 15, v1
        v_and_b32 v2, 31, v0
        v_lshl_add_u32 v1, v2, 4, v1''')
        TMP, PK = FW, FW + 16
        self.w4n = 0
        for t in range(7):
            pk = PK + 4 * (t % 2)
            self.gelu_pairs([(ACC + 28 * a_ + 4 * t + 2 * p, CS + 4 * t + 2 * p, K[a_], K[a_] + 2, K[a_] + 4, K[a_] + 6, pk + 2 * a_ + p)
                             for a_ in range(2) for p in range(2)], TMP)
            e(f'v_permlane16_swap_b32 {v(pk)}, {v(pk+2)}\nv_permlane16_swap_b32 {v(pk+1)}, {v(pk+3)}')
            e(f'buffer_store_dwordx4 {v(pk,4)}, v1, {srd(SWS)}, s63 offen sc1\ns_add_u32 s63, s63, 65536', tag='st')
            self.w4_dma(2 if t < 6 else 1)
        e(f's_lshl_b32 s75, s{sT3}, 7\ns_add_u32 s75, s75, {C3*128}')
        self.signal(75, 'st')
        self.stamp()
    def w4_dma(self, nsteps):
        e = self.e
        for _ in range(nsteps):
            sg = self.w4n; self.w4n += 1
            slot = sg if sg < 16 else sg - 16
            e(f's_add_u32 m0, s68, {slot*8192}\nbuffer_load_dwordx4 {v(vWD)}, {srd(SW4)}, s66 offen lds\ns_add_u32 s66, s66, 32768', tag='w4')
            e(f's_add_u32 m0, s68, {slot*8192+4096}\nbuffer_load_dwordx4 {v(vWD)}, {srd(SW4)}, s67 offen lds\ns_add_u32 s67, s67, 32768', tag='w4')

    def window3(self):
        e = self.e
        e.vm = [(set(), 'w4')] * 3
        self.w4_dma(16 - self.w4n)
        e(f'''v_lshlrev_b32 v1, 4, {v(vLN)}
        s_lshl_b32 s63, s2, 13
        s_lshl_b32 s3, s{sW}, 11
        s_add_u32 s63, s63, s3
        s_lshr_b32 s64, s{sW}, 1
        s_and_b32 s65, s{sW}, 1
        s_lshl_b32 s69, s64, 5
        s_add_u32 s69, s69, s3
        s_lshl_b32 s70, s64, 8
        s_add_u32 s70, s70, s3
        s_lshl_b32 s71, s2, 2
        s_lshl_b32 s3, s64, 1
        s_add_u32 s71, s71, s3''')
        DV = T + 4
        e(f'buffer_load_ushort {v(DV)}, {v(vZ)}, {srd(SSD)}, s71 offen')
        for i in range(2): e(f's_add_u32 m0, s69, {HB + 32}\nbuffer_load_dwordx4 v1, {srd(SSK)}, s63 offen offset:{1024*i} lds', tag='cv')
        e(f's_add_u32 s63, s63, {WS_KVT}')
        self.check_verify(32, 's72')
        for i in range(2): e(f's_add_u32 m0, s70, {UB + 256}\nbuffer_load_dwordx4 v1, {srd(SWS)}, s63 offen offset:{1024*i} sc1 lds', tag='cv')
        e(f'''v_mov_b32 v4, 0
        v_mov_b32 v5, 0
        v_mov_b32 v6, 0
        v_mov_b32 v7, 0
        s_mul_i32 s3, s64, 4352
        v_add_u32 v2, s3, v1
        v_add_u32 v2, {UB}, v2
        s_mul_i32 s3, s64, 4128
        v_add_u32 v3, s3, v1
        v_add_u32 v3, {HB}, v3
        s_mov_b64 exec, 0xffff
        ds_write_b128 v2, v[4:7]
        s_mov_b64 exec, 3
        ds_write_b128 v3, v[4:7]
        s_mul_i32 s3, s64, 528
        v_mov_b32 v2, s3
        v_add_u32 v2, {CARR}, v2
        s_mov_b64 exec, 1
        ds_write_b128 v2, v[4:7]
        s_mov_b64 exec, -1''')
        aW = T
        self.aW4 = aW
        e(f's_lshl_b32 s3, s65, 12\nv_add_u32 {v(aW)}, s3, {v(self.vWstd)}')
        for t in range(1, 4): e(f'v_xor_b32 {v(aW+t)}, {32*t}, {v(aW)}')
        e('s_waitcnt vmcnt(0) lgkmcnt(0)\ns_barrier')
        e.auto = False
        for sg in range(12):
            if sg == 8:
                for t in range(4): e(f'v_add_u32 {v(aW+t)}, 65536, {v(aW+t)}')
            for t in range(4):
                for hh in range(2): e(f'ds_read_b64_tr_b16 {a(16*sg+4*t+2*hh,2)}, {v(aW+t)} offset:{(sg%8)*8192+hh*512}')
        e('s_waitcnt lgkmcnt(0)\ns_barrier')
        e.auto = True
        self.stamp()
        aH, aU, ACC, FU = T + 5, T + 6, T + 8, T + 72
        FH = 192
        e(f'''v_lshl_add_u32 v1, {v(vG)}, 3, {v(vR)}
        v_add_u32 v1, v1, {v(vCQ)}
        v_lshlrev_b32 v1, 3, v1
        s_mul_i32 s3, s64, 4128
        s_add_u32 s3, s3, {HB + 8}
        v_add_u32 {v(aH)}, s3, v1
        v_lshlrev_b32 v1, 5, {v(vCQ)}
        v_lshlrev_b32 v2, 6, {v(vG)}
        v_sub_u32 v1, v1, v2
        v_lshlrev_b32 v2, 3, {v(vR)}
        v_sub_u32 v1, v1, v2
        s_mul_i32 s3, s64, 4352
        s_lshl_b32 s63, s65, 7
        s_add_u32 s3, s3, s63
        s_add_u32 s3, s3, {UB + 256 + 24 - 32}
        v_add_u32 {v(aU)}, s3, v1''')
        def rdf(q):
            for hh in range(2): e(f'ds_read_b64_tr_b16 {a(FH+4*q+2*hh,2)}, {v(aH)} offset:{256*q+32*hh}')
            for hh in range(2): e(f'ds_read_b64_tr_b16 {v(FU+4*q+2*hh,2)}, {v(aU)} offset:{256*q+32-32*hh}')
        def horner(J):
            d = ACC + 4 * J
            return [f'v_add_f32_dpp {v(d+k)}, {v(d+k+1)}, {v(d+k)} wave_shr:1 row_mask:0xf bank_mask:0xf bound_ctrl:0' for k in (2, 1, 0)]
        rdf(0); rdf(1)
        pend = []
        n = 0
        for J in range(16):
            if J + 2 < 16: rdf(J + 2)
            for q in range(J + 1):
                c = v(ACC + 4 * J, 4) if q else '0'
                e(f'{MF} {v(ACC+4*J,4)}, {v(FU+4*(J-q),4)}, {a(FH+4*q,4)}, {c}')
                n += 1
                if n % 10 == 0 and self.w4n < 28: self.w4_dma(1)
                if q >= 3 and pend: e(pend.pop(0))
            if J >= 1: pend += horner(J - 1) if J >= 4 else []
        self.w4_dma(28 - self.w4n)
        rest = [horner(J) for J in (0, 1, 2, 15)]
        for p in pend: e(p)
        for k in range(3):
            for h in rest: e(h[k])
        e(f'''v_lshlrev_b32 v1, 2, {v(vLN)}
        s_mul_i32 s3, s64, {YB1 - YB0}
        s_lshl_b32 s63, s65, 8
        s_add_u32 s3, s3, s63
        s_add_u32 s3, s3, {YB0}
        v_add_u32 v1, s3, v1
        s_mul_i32 s3, s64, 528
        s_lshl_b32 s63, s65, 4
        s_add_u32 s3, s3, s63
        s_add_u32 s3, s3, {CARR + 16}
        v_mov_b32 v2, s3
        s_barrier''')
        for J in range(16): e(f'ds_write_b32 v1, {v(ACC+4*J)} offset:{512*J}')
        e('s_mov_b32 exec_lo, 0\ns_mov_b32 exec_hi, 0x80000000')
        for J in range(16): e(f'ds_write_b128 v2, {v(ACC+4*J,4)} offset:{32*J}')
        e(f'''s_mov_b64 exec, -1
        v_lshlrev_b32 {v(DV)}, 16, {v(DV)}
        v_lshlrev_b32 v1, 5, {v(vLN)}
        s_mul_i32 s3, s64, {YB1 - YB0}
        s_lshl_b32 s63, s65, 12
        s_add_u32 s3, s3, s63
        s_add_u32 s3, s3, {YB0}
        v_add_u32 v1, s3, v1
        v_lshlrev_b32 v3, 4, {v(vLN)}
        s_mul_i32 s3, s64, 4352
        s_lshl_b32 s63, s65, 11
        s_add_u32 s3, s3, s63
        s_add_u32 s3, s3, {UB + 256}
        v_add_u32 v2, s3, v3
        v_lshrrev_b32 v4, 3, {v(vLN)}
        v_lshlrev_b32 v4, 4, v4
        s_lshl_b32 s63, s65, 8
        v_add_u32 v4, s63, v4
        v_add_u32 v5, 128, v4
        v_and_b32 v6, 7, v0
        v_cmp_eq_u32 vcc, 0, v6
        v_cndmask_b32 v4, 0, v4, vcc
        v_cndmask_b32 v5, 0, v5, vcc
        s_mul_i32 s3, s64, 528
        s_add_u32 s3, s3, {CARR}
        v_add_u32 v4, s3, v4
        v_add_u32 v5, s3, v5
        s_lshl_b32 s63, s2, 13
        s_lshl_b32 s3, s{sW}, 11
        s_add_u32 s63, s63, s3
        s_add_u32 s63, s63, {WS_YT}
        s_waitcnt lgkmcnt(0)
        s_barrier''')
        Y, U, CR, UF = ACC, ACC + 16, ACC + 24, ACC + 32
        for i in range(2):
            e(f'ds_read_b128 {v(Y+8*i,4)}, v1 offset:{2048*i}\nds_read_b128 {v(Y+8*i+4,4)}, v1 offset:{2048*i+16}')
            e(f'ds_read_b128 {v(U+4*i,4)}, v2 offset:{1024*i}\nds_read_b128 {v(CR+4*i,4)}, {v(4+i)}')
        for i in range(2):
            for k in range(3): e(f'v_add_f32 {v(Y+8*i+k)}, {v(Y+8*i+k)}, {v(CR+4*i+1+k)}')
            for k in range(4): e(f'v_lshlrev_b32 {v(UF+2*k)}, 16, {v(U+4*i+k)}\nv_and_b32 {v(UF+2*k+1)}, 0xffff0000, {v(U+4*i+k)}')
            for k in range(8): e(f'v_fmac_f32 {v(Y+8*i+k)}, {v(UF+k)}, {v(DV)}')
            for k in range(4): e(f'v_cvt_pk_bf16_f32 {v(U+4*i+k)}, {v(Y+8*i+2*k)}, {v(Y+8*i+2*k+1)}')
            e(f'buffer_store_dwordx4 {v(U+4*i,4)}, v3, {srd(SWS)}, s63 offen offset:{1024*i} sc1', tag='st')
        self.signal(73, 'st')
        e('s_waitcnt vmcnt(0)')
        self.stamp()

    def phase4(self):
        e = self.e
        aW = self.aW4
        dK, dS, ACC, FX, FW, X1F = T + 4, T + 5, T + 8, T + 40, T + 72, T + 104
        e(f'''s_lshr_b32 s64, s{sW}, 1
        s_and_b32 s65, s{sW}, 1
        s_lshl_b32 s63, s{sTT}, 6
        s_lshl_b32 s3, s{sW}, 4
        s_add_u32 s63, s63, s3
        v_add_u32 v1, s63, {v(vJ)}
        v_lshlrev_b32 v2, 15, {v(vG)}
        v_lshl_add_u32 {v(dK)}, v1, 4, v2
        v_xor_b32 {v(dS)}, 256, {v(dK)}
        s_mul_i32 s63, s65, {28*131072}
        s_add_u32 s63, s63, {WS_H2}
        s_lshr_b32 s66, s{sTT}, 1
        s_lshl_b32 s66, s66, 7
        s_add_u32 s66, s66, {C3*128}''')
        for p in range(8): e(f'v_lshlrev_b32 {v(X1F+2*p)}, 16, {v(X1P+p)}\nv_and_b32 {v(X1F+2*p+1)}, 0xffff0000, {v(X1P+p)}')
        L = self.lab('p4w')
        e(f's_cmp_lg_u32 s{sW}, 0\ns_cbranch_scc1 {L}')
        self.poll(v(vZ), 1, 16, 's66')
        e.label(L)
        e('s_barrier')
        self.stamp()
        cnt = [0]
        def ldx(u):
            e(f'buffer_load_dwordx4 {v(FX+8*u,4)}, {v(dK)}, {srd(SWS)}, s63 offen sc1\nbuffer_load_dwordx4 {v(FX+8*u+4,4)}, {v(dS)}, {srd(SWS)}, s63 offen sc1')
            e('s_add_u32 s63, s63, 131072')
        def ldw(sg):
            slot = sg if sg < 16 else sg - 16
            if sg == 16:
                for t in range(4): e(f'v_subrev_u32 {v(aW+t)}, 65536, {v(aW+t)}')
            if sg == 24:
                for t in range(4): e(f'v_add_u32 {v(aW+t)}, 65536, {v(aW+t)}')
            return [f'ds_read_b64_tr_b16 {v(FW+16*(sg%2)+4*t+2*hh,2)}, {v(aW+t)} offset:{(slot%8)*8192+hh*512}' for t in range(4) for hh in range(2)]
        for u in range(4): ldx(u)
        for sg in range(28):
            u = sg % 4
            rds = ldw(sg + 1) if 11 <= sg < 27 else []
            for t in range(4):
                for sl in range(2):
                    w = a(16 * sg + 4 * t, 4) if sg < 12 else v(FW + 16 * (sg % 2) + 4 * t, 4)
                    c = v(ACC + 16 * sl + 4 * t, 4) if sg else '0'
                    e(f'{MF} {v(ACC+16*sl+4*t,4)}, {w}, {v(FX+8*u+4*sl,4)}, {c}')
                    if rds: e(rds.pop(0))
            if sg + 4 < 28: ldx(u)
            if sg == 12:
                e(f'''v_lshrrev_b32 v1, 3, {v(vLN)}
                v_and_b32 v2, 7, v0
                v_and_b32 v3, 6, v1
                v_xor_b32 v2, v2, v3
                v_lshlrev_b32 v1, 12, v1
                v_lshl_add_u32 v7, v2, 4, v1
                s_lshl_b32 s66, s{sNT}, 7
                s_add_u32 s66, s66, {CY*128}
                s_lshl_b32 s67, s{sNT}, 18
                s_lshl_b32 s3, s{sW}, 16
                s_add_u32 s67, s67, s3
                s_lshl_b32 s3, s{sTT}, 7
                s_add_u32 s67, s67, s3
                s_add_u32 s67, s67, {WS_YT}
                s_lshl_b32 s68, s{sW}, 11''')
                self.check_issue('s66')
            if sg == 18:
                self.check_verify(32, 's66')
                e(f's_add_u32 m0, s68, {YIN}\nbuffer_load_dwordx4 v7, {srd(SWS)}, s67 offen sc1 lds\ns_add_u32 s67, s67, 32768')
                e(f's_add_u32 m0, s68, {YIN + 1024}\nbuffer_load_dwordx4 v7, {srd(SWS)}, s67 offen sc1 lds')
        self.stamp()
        e(f'''v_lshlrev_b32 v1, 4, {v(vLN)}
        s_lshl_b32 s3, s{sW}, 12
        s_add_u32 s3, s3, {EXC}
        v_add_u32 v1, s3, v1
        v_xor_b32 v2, 4096, v1''')
        for t in range(4): e(f'ds_write_b128 v1, {v(ACC+16+4*t,4)} offset:{1024*t}')
        e(f'''v_lshl_add_u32 v3, {v(vG)}, 2, {v(vR)}
        v_and_b32 v4, 6, v3
        v_lshrrev_b32 v5, 1, {v(vCQ)}
        s_lshl_b32 s3, s{sW}, 1
        v_add_u32 v5, s3, v5
        v_xor_b32 v4, v4, v5
        v_lshlrev_b32 v4, 4, v4
        v_and_b32 v5, 1, {v(vCQ)}
        v_lshl_or_b32 v4, v5, 3, v4
        v_lshl_add_u32 v3, v3, 7, v4
        v_add_u32 v3, {YIN}, v3
        s_waitcnt vmcnt(0) lgkmcnt(0)
        s_barrier''')
        YR, YF, O, E = FW, FX, ACC, FX + 16
        for t in range(4): e(f'ds_read_b128 {v(ACC+16+4*t,4)}, v2 offset:{1024*t}')
        for t in range(4): e(f'ds_read_b64_tr_b16 {v(YR+2*t,2)}, v3 offset:{2048*t}')
        e(f'v_mov_b32 v4, {fbits(-1.4426950408889634)}\nv_mov_b32 v5, v4\nv_mov_b32 v6, 1.0\nv_mov_b32 v7, 1.0')
        for p in range(8): e(f'v_pk_add_f32 {v(O+2*p,2)}, {v(O+2*p,2)}, {v(X1F+2*p,2)}')
        for p in range(8): e(f'v_pk_add_f32 {v(O+2*p,2)}, {v(O+2*p,2)}, {v(ACC+16+2*p,2)}')
        for p in range(8): e(f'v_pk_mul_f32 {v(E+2*p,2)}, {v(O+2*p,2)}, v[4:5]')
        for i in range(16): e(f'v_exp_f32 {v(E+i)}, {v(E+i)}')
        for p in range(8): e(f'v_lshlrev_b32 {v(YF+2*p)}, 16, {v(YR+p)}\nv_and_b32 {v(YF+2*p+1)}, 0xffff0000, {v(YR+p)}')
        for p in range(8): e(f'v_pk_add_f32 {v(E+2*p,2)}, {v(E+2*p,2)}, v[6:7]')
        for i in range(16): e(f'v_rcp_f32 {v(E+i)}, {v(E+i)}')
        for p in range(8): e(f'v_pk_mul_f32 {v(YF+2*p,2)}, {v(YF+2*p,2)}, {v(XN+2*p,2)}')
        for p in range(8): e(f'v_pk_mul_f32 {v(O+2*p,2)}, {v(O+2*p,2)}, {v(E+2*p,2)}')
        for p in range(8): e(f'v_pk_fma_f32 {v(O+2*p,2)}, {v(O+2*p,2)}, {v(YF+2*p,2)}, {v(XF+2*p,2)}')
        for p in range(8): e(f'v_cvt_pk_bf16_f32 {v(YR+p)}, {v(O+2*p)}, {v(O+2*p+1)}')
        e(f'''v_lshrrev_b32 v1, 1, {v(vG)}
        v_and_b32 v2, 7, {v(vJ)}
        v_xor_b32 v1, v1, v2
        v_lshlrev_b32 v1, 4, v1
        v_and_b32 v2, 1, {v(vG)}
        v_lshl_or_b32 v1, v2, 3, v1
        v_lshl_add_u32 v1, {v(vJ)}, 7, v1
        s_lshl_b32 s3, s{sW}, 11
        s_add_u32 s3, s3, {OST}
        v_add_u32 v1, s3, v1
        v_lshrrev_b32 v3, 3, {v(vLN)}
        v_and_b32 v4, 7, v0
        v_xor_b32 v5, v3, v4
        v_lshlrev_b32 v5, 4, v5
        v_lshl_add_u32 v5, v3, 7, v5
        v_add_u32 v5, s3, v5
        v_lshlrev_b32 v3, 10, v3
        v_lshl_add_u32 v3, v4, 4, v3
        s_lshl_b32 s63, s{sTT}, 16
        s_lshl_b32 s3, s{sW}, 14
        s_add_u32 s63, s63, s3
        s_lshl_b32 s3, s{sNT}, 7
        s_add_u32 s63, s63, s3
        s_add_u32 s64, s63, 8192''')
        for t in range(4): e(f'v_xor_b32 v2, {32*t}, v1\nds_write_b64 v2, {v(YR+2*t,2)}')
        e('s_waitcnt lgkmcnt(0)')
        e(f'ds_read_b128 {v(E,4)}, v5\nds_read_b128 {v(E+4,4)}, v5 offset:1024')
        e(f'buffer_store_dwordx4 {v(E,4)}, v3, {srd(SO)}, s63 offen\nbuffer_store_dwordx4 {v(E+4,4)}, v3, {srd(SO)}, s64 offen')
        self.stamp()

    def finish(self):
        e = self.e
        if self.prof:
            e(f's_waitcnt vmcnt(0)')
            self.stamp()
            e(f's_lshl_b32 s3, s2, 2\ns_add_u32 s3, s3, s{sW}\ns_lshl_b32 s3, s3, 7\ns_add_u32 s3, s3, {WS_PROF}\ns_mov_b64 exec, 1')
            for i in range(self.nst): e(f'v_mov_b32 v1, s{80+i}\nbuffer_store_dword v1, {v(vZ)}, {srd(SWS)}, s3 offen offset:{4*i}')
        if self.dbgtime:
            e(f's_waitcnt vmcnt(0)\ns_memrealtime s[76:77]\ns_waitcnt lgkmcnt(0)\ns_cmp_lg_u32 s{sW}, 0\ns_cbranch_scc1 L_end')
            e(f's_and_b32 s3, s2, 0x38\ns_cmp_lg_u32 s3, 0\ns_cbranch_scc1 L_end\ns_not_b32 s79, s78\ns_mov_b64 exec, 1')
            e(f'v_mov_b32 v1, s79\nv_mov_b32 v2, s76\nbuffer_atomic_umax v1, {v(vZ)}, {srd(SDB)}, 0 offen offset:8 sc1')
            e(f'buffer_atomic_umax v2, {v(vZ)}, {srd(SDB)}, 0 offen offset:12 sc1')
        e.label('L_end')
        e('s_endpgm')

    def build(self):
        steps = [self.setup, self.phase1, self.window1, self.phase2, self.window2, self.phase3, self.window3, self.phase4]
        for i, f in enumerate(steps):
            if i > self.stop: break
            self.e.c(f'==== {f.__name__}')
            f()
        self.finish()
        lines, nn = insert_nops(self.e.lines)
        for wg in (0, 1, 77, 255):
            bars = set()
            for w in range(4):
                errs, nb, cnt = trace_check(lines, wg, w, verbose=(wg == 77 and w == 1 and not self.prof))
                bars.add(nb)
                for x in errs[:10]: print(f'TRACE wg{wg} w{w}:', x, file=sys.stderr)
            assert len(bars) == 1, ('barrier counts differ', wg, bars)
        return lines, nn, cnt

HEADER = open('recurrent_scan__ssm_conv_h3__mixer_s_mlp__prompt.s.ref').read().split('; Override launch')[0] if __name__ == '__main__' else ''
def full(lines, header=''):
    return header + f"""; @launch grid=(256,1,1) block=(256,1,1) lds={LDS_BYTES}
.amdgcn_target "amdgcn-amd-amdhsa--gfx950"
.text
.globl {KN}
.p2align 8
.type {KN},@function
{KN}:
""" + '\n'.join(lines) + f"""
.section .rodata,"a"
.p2align 6
.amdhsa_kernel {KN}
  .amdhsa_next_free_vgpr 512
  .amdhsa_next_free_sgpr 102
  .amdhsa_accum_offset 256
  .amdhsa_group_segment_fixed_size 0
  .amdhsa_kernarg_size 112
  .amdhsa_user_sgpr_count 2
  .amdhsa_user_sgpr_kernarg_segment_ptr 1
  .amdhsa_system_sgpr_workgroup_id_x 1
.end_amdhsa_kernel
"""
if __name__ == '__main__':
    import argparse
    ap = argparse.ArgumentParser()
    ap.add_argument('-o', default='k.s'); ap.add_argument('--prof', type=int, default=0); ap.add_argument('--stop', type=int, default=99)
    ap.add_argument('--rot', type=int, default=0)
    ap.add_argument('--dbgtime', type=int, default=0)
    A = ap.parse_args()
    g = G(prof=A.prof, stop=A.stop, rot=A.rot, dbgtime=A.dbgtime)
    lines, nn, cnt = g.build()
    open(A.o, 'w').write(full(lines, HEADER))
    print('lines', len(lines), 'nops inserted', nn, cnt)
```
